```python
import torch

def _softmax(x, axis=-1):
    return torch.softmax(x, dim=axis)
def _gelu(x):
    return torch.nn.functional.gelu(x, approximate="tanh")
def _silu(x):
    return torch.nn.functional.silu(x)
def _sigmoid(x):
    return torch.sigmoid(x)
def _layernorm(x, axis=-1, eps=1e-5):
    m = x.mean(dim=axis, keepdim=True)
    v = x.var(dim=axis, keepdim=True, unbiased=False)
    return (x - m) / torch.sqrt(v + eps)
def _scatter_add(tgt, idx, src, axis=0):
    return tgt.clone().index_add_(axis, idx, src)
def _segment_sum(src, seg, n):
    out = torch.zeros((n,) + src.shape[1:], dtype=src.dtype)
    return out.index_add_(0, seg, src)
def _pad(x, pw):
    flat = tuple(v for pair in reversed(pw) for v in pair)
    return torch.nn.functional.pad(x, flat)

kernel_name = 'interleave_layers__softmax_full_mha__dense_activation_gelu__prompt'

def setup_inputs():

    _w = (lambda a: (lambda t: t.to(torch.bfloat16) if t.is_floating_point() else t)(torch.as_tensor(a)))
    def _A_setup():
        B, S, D = 1, 2048, 640
        return {
            "x": _w((lambda *s: torch.randn(*s, dtype=torch.bfloat16) * 0.05)(B, S, D)),
            "wqkv": _w((lambda *s: torch.randn(*s, dtype=torch.bfloat16) * 0.05)(D, 3 * D)),
            "wo": _w((lambda *s: torch.randn(*s, dtype=torch.bfloat16) * 0.05)(D, D)),
        }
    _A_in = _A_setup()

    def _B_setup():
        B, S, D, F = 1, 2048, 640, 1536
        return {
            "x": _w((lambda *s: torch.randn(*s, dtype=torch.bfloat16) * 0.05)(B, S, D)),
            "w1": _w((lambda *s: torch.randn(*s, dtype=torch.bfloat16) * 0.8)(D, F) * (D ** -0.5)),
            "b1": _w((lambda *s: torch.randn(*s, dtype=torch.bfloat16) * 0.8)(F) * 0.01),
            "w2": _w((lambda *s: torch.randn(*s, dtype=torch.bfloat16) * 0.8)(F, D) * (F ** -0.5)),
            "b2": _w((lambda *s: torch.randn(*s, dtype=torch.bfloat16) * 0.8)(D) * 0.01),
        }
    _B_in = _B_setup()

    return {
        "A_x": _A_in["x"],
        "A_wqkv": _A_in["wqkv"],
        "A_wo": _A_in["wo"],
        "B_x": _B_in["x"],
        "B_w1": _B_in["w1"],
        "B_b1": _B_in["b1"],
        "B_w2": _B_in["w2"],
        "B_b2": _B_in["b2"],
    }

def reference(A_x, A_wqkv, A_wo, B_x, B_w1, B_b1, B_w2, B_b2):
    def _A_ref(x, wqkv, wo):
        B, S, D = x.shape
        H = 32; Dh = D // H
        qkv = (lambda x, *d: x.permute(*d))((x @ wqkv).reshape(B, S, 3, H, Dh), 2, 0, 3, 1, 4)
        q, k, v = qkv[0], qkv[1], qkv[2]
        scale = Dh ** -0.5
        scores = torch.einsum("bhqd,bhkd->bhqk", q, k) * scale
        p = _softmax(scores, axis=-1)
        o = torch.einsum("bhqk,bhkd->bhqd", p, v)
        return (lambda x, *d: x.permute(*d))(o, 0, 2, 1, 3).reshape(B, S, D) @ wo

    def _B_ref(x, w1, b1, w2, b2):
        h = torch.einsum("bsd,df->bsf", x, w1) + b1
        h = _gelu(h)
        return torch.einsum("bsf,fd->bsd", h, w2) + b2

    x = A_x
    x = x + _A_ref(_layernorm(x, axis=-1), A_wqkv, A_wo)
    x = x + _B_ref(_layernorm(x, axis=-1), B_w1, B_b1, B_w2, B_b2)
    x = x + _A_ref(_layernorm(x, axis=-1), A_wqkv, A_wo)
    x = x + _B_ref(_layernorm(x, axis=-1), B_w1, B_b1, B_w2, B_b2)
    return x
```

```python
import re

class Asm:
    def __init__(self):
        self.lines = []
        self.nlab = 0
    def __call__(self, s):
        for l in s.split("\n"):
            l = l.strip()
            if l:
                self.lines.append(l)
    def label(self, name):
        self.lines.append(name + ":")
    def newlabel(self, base="L"):
        self.nlab += 1
        return f"{base}_{self.nlab}"
    def text(self):
        out = []
        for l in self.lines:
            if l.endswith(":") or l.startswith("."):
                out.append(l)
            else:
                out.append("    " + l)
        return "\n".join(out) + "\n"

def v(a, n=1):
    return f"v{a}" if n == 1 else f"v[{a}:{a+n-1}]"
def s(a, n=1):
    return f"s{a}" if n == 1 else f"s[{a}:{a+n-1}]"

class Ctr:
    def __init__(self, asm, name, maxv):
        self.asm, self.name, self.maxv = asm, name, maxv
        self.issued = 0
        self.done = 0
    def issue(self):
        self.issued += 1
        return self.issued
    def wait(self, ticket):
        if ticket <= self.done:
            return
        n = self.issued - ticket
        n = min(n, self.maxv)
        self.asm(f"s_waitcnt {self.name}({n})")
        self.done = self.issued - n
    def waitall(self):
        self.asm(f"s_waitcnt {self.name}(0)")
        self.done = self.issued
    def reset(self):
        self.issued = self.done = 0

_reg = re.compile(r"\b([vsa])(\d+)\b|\b([vsa])\[(\d+):(\d+)\]|\b(vcc|exec|m0|scc)(_lo|_hi)?\b")
def regs_of(op):
    out = set()
    for m in _reg.finditer(op):
        if m.group(1): out.add(m.group(1) + m.group(2))
        elif m.group(3):
            for i in range(int(m.group(4)), int(m.group(5)) + 1): out.add(m.group(3) + str(i))
        else: out.add(m.group(6))
    return out

TRANS = ("v_exp_", "v_log_", "v_rcp_", "v_rsq_", "v_sqrt_", "v_sin_", "v_cos_")
def passes(mn):
    if "32x32x4_2b" in mn: return 16
    if "32x32" in mn: return 8
    if "16x16" in mn: return 4
    if "4x4" in mn: return 2
    raise ValueError(mn)

class I:
    pass

def parse(lines):
    ins, labels = [], {}
    for ln, l in enumerate(lines):
        l = l.split(";")[0].strip()
        if not l or l.startswith("."):
            continue
        if l.endswith(":"):
            labels[l[:-1]] = len(ins); continue
        parts = l.split(None, 1)
        mn = parts[0]; rest = parts[1] if len(parts) > 1 else ""
        ops = [o.strip() for o in re.split(r",(?![^\[]*\])", rest)] if rest else []
        i = I(); i.mn = mn; i.ops = ops; i.text = l; i.ln = ln
        i.w = set(); i.r = set(); i.srcC = set(); i.srcAB = set()
        i.mfma = mn.startswith("v_mfma") or mn.startswith("v_smfmac")
        i.valu = mn.startswith("v_") and not i.mfma
        i.dot = mn.startswith("v_dot")
        i.trans = mn.startswith(TRANS)
        i.vmem = mn.startswith(("buffer_", "global_", "flat_"))
        i.ds = mn.startswith("ds_")
        i.salu = mn.startswith("s_")
        i.states = 1
        if mn == "s_nop": i.states = int(ops[0], 0) + 1
        if i.mfma:
            i.w = regs_of(ops[0]); i.srcAB = regs_of(ops[1]) | regs_of(ops[2])
            c = ops[3].split()[0]
            if mn.startswith("v_smfmac"):
                i.srcC = set(i.w); i.srcAB |= regs_of(c)
            else:
                i.srcC = regs_of(c)
            i.r = i.srcAB | i.srcC; i.p = passes(mn)
        elif i.valu:
            nd = 1
            if mn.startswith(("v_add_co", "v_sub_co", "v_addc_co", "v_subb_co", "v_div_scale", "v_mad_u64")): nd = 2
            if mn.startswith("v_permlane") and "swap" in mn:
                i.w = regs_of(ops[0]) | regs_of(ops[1]); i.r = set(i.w)
            else:
                for o in ops[:nd]: i.w |= regs_of(o)
                for o in ops[nd:]: i.r |= regs_of(o)
                if mn.startswith(("v_fmac", "v_dot2c", "v_pk_fmac", "v_writelane")): i.r |= i.w
                if mn.startswith("v_cmpx"): i.w.add("exec")
            i.dpp = "dpp" in mn or "quad_perm" in l or "row_" in l
        elif i.vmem:
            isload = "_load" in mn
            lds = bool(re.search(r"\blds\b", l)) or "load_lds" in mn
            i.ldsdma = lds
            if mn in ("buffer_inv", "buffer_wbl2"): pass
            elif isload and not lds:
                i.w = regs_of(ops[0])
                for o in ops[1:]: i.r |= regs_of(o)
            else:
                for o in ops: i.r |= regs_of(o)
                if "atomic" in mn and "sc0" in l: i.w = regs_of(ops[0])
            if lds: i.r.add("m0")
            i.widestore = ("_store_dwordx4" in mn or "_store_dwordx3" in mn)
            if i.widestore:
                i.sdata = regs_of(ops[0]) if mn.startswith("buffer") else regs_of(ops[1])
        elif i.ds:
            if mn.startswith("ds_read") or "_rtn" in mn or "permute" in mn or "swizzle" in mn:
                i.w = regs_of(ops[0])
                for o in ops[1:]: i.r |= regs_of(o)
            else:
                for o in ops: i.r |= regs_of(o)
        else:
            if mn.startswith(("s_cmp", "s_bitcmp", "s_cbranch", "s_branch", "s_waitcnt", "s_barrier", "s_nop", "s_endpgm", "s_sleep", "s_setprio")):
                for o in ops: i.r |= regs_of(o)
            elif ops:
                i.w = regs_of(ops[0])
                for o in ops[1:]: i.r |= regs_of(o)
                if "saveexec" in mn: i.w.add("exec")
        ins.append(i)
    for k, i in enumerate(ins): i.preds = []
    for k, i in enumerate(ins):
        if i.mn in ("s_branch", "s_call_b64") or i.mn.startswith("s_cbranch"):
            t = labels.get(i.ops[-1])
            if t is not None and t < len(ins): ins[t].preds.append(k)
        if i.mn not in ("s_branch", "s_endpgm", "s_setpc_b64") and k + 1 < len(ins):
            ins[k + 1].preds.append(k)
    return ins

def need(p, c):
    n = 0
    vw = {x for x in p.w if x[0] in "va" and x not in ("vcc",)}
    sw = {x for x in p.w if (x[0] == "s" and x != "scc") or x == "vcc"}
    if p.mfma:
        P = {2: 0, 4: 1, 8: 2, 16: 3}[p.p]
        if c.mfma:
            if c.srcAB & p.w: n = max(n, [5, 8, 12, 20][P])
            if c.srcC & p.w:
                if c.srcC == p.w and c.p == p.p: n = max(n, [2, 0, 0, 0][P])
                else: n = max(n, [4, 6, 10, 18][P])
            elif c.w & p.w:
                n = max(n, [4, 6, 10, 18][P]) if c.p < p.p else n
        elif (c.valu or c.vmem or c.ds):
            if (c.r | c.w) & p.w: n = max(n, [5, 8, 12, 20][P])
            if c.valu and (c.w & p.srcC): n = max(n, [1, 3, 7, 15][P])
    if p.valu:
        if c.mfma and (c.r & vw): n = max(n, 3 if p.dot else 2)
        if c.mfma and "exec" in p.w: n = max(n, 4)
        if p.dot and (c.valu or c.vmem or c.ds) and ((c.r | c.w) & vw):
            if not (c.mn == p.mn and not ((regs_of(c.ops[1]) | regs_of(c.ops[2])) & vw)): n = max(n, 3)
        if p.trans and c.valu and not c.trans and (c.r & vw): n = max(n, 1)
        if c.valu and c.mn.startswith(("v_readlane", "v_readfirstlane")) and (c.r & vw): n = max(n, 1)
        if c.valu and c.mn.startswith("v_permlane") and (c.r & vw): n = max(n, 2)
        if c.valu and getattr(c, "dpp", False) and (c.r & vw): n = max(n, 2)
        if c.vmem and (c.r & sw): n = max(n, 5)
        if c.valu and (c.r & sw): n = max(n, 2)
        if c.valu and c.mn.startswith(("v_readlane", "v_writelane")) and (c.r & sw): n = max(n, 4)
        if "exec" in p.w and c.valu and (c.mn.startswith(("v_readlane", "v_readfirstlane", "v_writelane", "v_permlane"))): n = max(n, 4)
        if "exec" in p.w and c.valu and getattr(c, "dpp", False): n = max(n, 5)
        if ("op_sel" in p.text or "sdwa" in p.mn) and not p.mn.startswith("v_pk") and c.valu and ((c.r | c.w) & vw): n = max(n, 1)
    if p.vmem and getattr(p, "widestore", False):
        if c.w & p.sdata: n = max(n, 2 if c.valu else 1)
    if p.salu and "m0" in p.w and c.vmem and getattr(c, "ldsdma", False): n = max(n, 1)
    return n

def lint(lines, maxd=21):
    ins = parse(lines)
    probs = []
    for k, c in enumerate(ins):
        if not (c.valu or c.mfma or c.vmem or c.ds): continue
        stack = [(p, 0) for p in c.preds]
        seen = {}
        while stack:
            pk, d = stack.pop()
            if seen.get(pk, 99) <= d: continue
            seen[pk] = d
            p = ins[pk]
            nn = need(p, c)
            if nn > d:
                probs.append(f"line {c.ln}: '{c.text}' needs {nn} states after line {p.ln} '{p.text}', has {d}")
            d2 = d + p.states
            if d2 < maxd:
                for q in p.preds: stack.append((q, d2))
    return probs
```

```python
import sys, math, struct
from asmlib import *

KNAME = "interleave_layers__softmax_full_mha__dense_activation_gelu__prompt_kernel"

FO, FX, FH, FKV = 0, 8192, 16384, 32768
STATS = 0x10000
CS4P = STATS + 0x20000
DIAG = CS4P + 0x20000
WS_O = DIAG + 0x40000
WS_X = WS_O + 2621440
WS_H = WS_X + 2621440
W3P = WS_H + 6291456
W4P = W3P + 819200
W5P = W4P + 1966080
W1P = W5P + 1966080
WS_KV = W1P + 2621440
TB = 2624
KVB = 8 * TB
KVH = 8 * KVB
WS_END = WS_KV + 2 * 32 * KVH

NSLOT = 159
RING0 = 82
TAB = 159 * 1024
TAB_CS1, TAB_CS4, TAB_B1 = TAB, TAB + 256, TAB + 640
WIMG = 65536
XS = 0
CSP = WIMG + 92416
RPK = 3 * KVB
N3, N4, N5, N1 = 0, 100, 220, 460
def slot(n): return (RING0 + n) % NSLOT

S_WS, S_X, S_WQ, S_OUT, S_RAW = 4, 8, 12, 16, 20
sX, sJ, sW, sLayer, sFast, sSpin, sXcc = 24, 25, 26, 27, 28, 29, 30
sT16, sT32c, sC8, sC16 = 31, 32, 33, 34
sT32 = 35
sH = 36
sW1k = 37
sKV = 38
sOnes = 39
sUnit = 40
t0, t1, t2, t3, t4, t5, t6, t7 = 44, 45, 46, 47, 48, 49, 50, 51
sEx = 52
sC0, sC1 = 54, 56
sP = 58
sSoA, sSoB, sM0A, sM0B = 59, 60, 61, 62
KA = 64
P_X, P_WQ, P_WO, P_W1, P_B1, P_W2, P_B2, P_OUT, P_DBG, P_WS = 64, 66, 68, 72, 74, 76, 78, 80, 82, 84
sStampT = 86

vLane, vL16, vL16b, vL16c = 1, 2, 3, 4
vHH, vDiag = 5, 6
vT = 7
RES = 8
SEL1 = 28
SEL2 = 32
vOnesM = 34
vIdx = 35
vAKw = 36
vATw = 37
vAVw = 38
vAKt = 39
vAVr = 40
vOm = 41
vOt = 42
vXm = 43
vXt = 44
vSt = 45
vF32 = 46
vF16 = 47
V0 = 48

def f2u(x): return struct.unpack("<I", struct.pack("<f", x))[0]
def hexf(x): return "0x%08x" % f2u(x)

class Gen:
    def __init__(self, diag=False, stop=None, force_safe=False, force_slow=False):
        self.a = Asm()
        self.diag, self.stop = diag, stop
        self.force_safe, self.force_slow = force_safe, force_slow
        self.vm = Ctr(self.a, "vmcnt", 63)
        self.lg = Ctr(self.a, "lgkmcnt", 15)
        self.nstamp = 0
        self.stampnames = []

    def stamp(self, name):
        if not self.diag: return
        a = self.a
        if name in self.stampnames: idx = self.stampnames.index(name)
        else:
            idx = len(self.stampnames); self.stampnames.append(name)
        assert idx < 30
        a(f"s_memtime {s(sStampT,2)}")
        a("s_waitcnt lgkmcnt(0)")
        a(f"s_lshl_b32 {s(sStampT+1)}, {s(sLayer)}, 5")
        a(f"s_add_u32 m0, {s(sStampT+1)}, {idx}")
        a("s_nop 0")
        a(f"v_writelane_b32 {v(vDiag)}, {s(sStampT)}, m0")
        self.lg.done = self.lg.issued

    def wait(self, vt=None, lt=None):
        parts = []
        for c, t in ((self.vm, vt), (self.lg, lt)):
            if t is None or t <= c.done: continue
            n = min(c.issued - t, c.maxv)
            parts.append(f"{c.name}({n})"); c.done = c.issued - n
        if parts: self.a("s_waitcnt " + " ".join(parts))

    def ldsaddr(self, byte):
        return [vL16, vL16b, vL16c][byte >> 16], byte & 0xffff

    def poll(self, vaddr, soff, val, tmp):
        a = self.a
        L, D = a.newlabel("Lpoll"), a.newlabel("Lpolld")
        a.label(L)
        a(f"buffer_load_dword {v(tmp)}, {v(vaddr)}, {s(S_WS,4)}, {s(soff)} offen sc1")
        a("s_waitcnt vmcnt(0)")
        a(f"v_cmp_gt_u32 vcc, {val}, {v(tmp)}")
        a(f"s_cbranch_vccz {D}")
        a(f"s_sub_u32 {s(sSpin)}, {s(sSpin)}, 1")
        a(f"s_cbranch_scc0 {L}")
        a(f"s_mov_b32 {s(sSpin)}, 0")
        a.label(D)
        self.vm.reset()

    def dual(self, emit):
        a = self.a
        S, E = a.newlabel("Lsafe"), a.newlabel("Lsend")
        a(f"s_cmp_eq_u32 {s(sFast)}, 0")
        a(f"s_cbranch_scc1 {S}")
        st = (self.vm.issued, self.vm.done, self.lg.issued, self.lg.done)
        emit("")
        a(f"s_branch {E}")
        a.label(S)
        self.vm.issued, self.vm.done, self.lg.issued, self.lg.done = st
        emit("sc1")
        a.label(E)

    def flagstore(self, soff, val, fl, va, vb):
        a = self.a
        a(f"v_mov_b32 {v(va)}, 0")
        a(f"v_mov_b32 {v(vb)}, {val}")
        a(f"s_mov_b64 exec, 1")
        a(f"buffer_store_dword {v(vb)}, {v(va)}, {s(S_WS,4)}, {s(soff)} offen {fl}")
        a(f"s_mov_b64 exec, -1")
        self.vm.issue()

    def wsrc(self, n):
        if n < N4: return 0, (n - N3) * 1024
        if n < N5: return 1, (n - N4) * 1024
        if n < N1: return 2, (n - N5) * 1024
        return 3, (n - N1) * 1024

    def dma_run(self, n0, n1, nw, sWave, throttle=None):
        a = self.a
        tick = {}
        n = n0
        while n < n1:
            ph, _ = self.wsrc(n)
            e = min(n1, [N4, N5, N1, N1 + 80][ph], n + (NSLOT - slot(n)))
            base = self.wbase[ph]
            k = n
            while k < e:
                cnt = min(nw, e - k)
                wv = sWave
                if cnt < nw:
                    a(f"s_min_u32 {s(t7)}, {s(sWave)}, {(cnt-1)*1024}")
                    wv = t7
                a(f"s_add_u32 m0, {s(wv)}, {slot(k)*1024}")
                a(f"s_add_u32 {s(t6)}, {s(wv)}, {s(base)}")
                off = self.wsrc(k)[1]
                a(f"s_add_u32 {s(t6)}, {s(t6)}, {off}")
                a(f"buffer_load_dwordx4 {v(vL16)}, {s(S_WS,4)}, {s(t6)} offen sc1 lds")
                tk = self.vm.issue()
                for q in range(k, k + cnt): tick[q] = tk
                if throttle is not None and self.vm.issued - self.vm.done > throttle:
                    self.wait(vt=self.vm.issued - throttle)
                k += cnt
            n = e
        return tick

    def init(self):
        a = self.a
        a(f"""
        s_cmp_ge_u32 s2, 256
        s_cbranch_scc1 L_exit
        s_load_dwordx16 {s(KA,16)}, s[0:1], 0
        s_load_dwordx4 {s(KA+16,4)}, s[0:1], 64
        s_load_dwordx2 {s(KA+20,2)}, s[0:1], 80
        v_lshrrev_b32 {v(vT)}, 6, v0
        v_and_b32 {v(vLane)}, 63, v0
        v_readfirstlane_b32 {s(sW)}, {v(vT)}
        s_and_b32 {s(sX)}, s2, 7
        s_lshr_b32 {s(sJ)}, s2, 3
        s_getreg_b32 {s(sXcc)}, hwreg(HW_REG_XCC_ID)
        s_and_b32 {s(sXcc)}, {s(sXcc)}, 7
        s_mov_b32 {s(sLayer)}, 0
        s_mov_b32 {s(sFast)}, 0
        s_mov_b32 {s(sSpin)}, 400000
        s_mov_b32 {s(sOnes)}, 0x3f803f80
        v_lshlrev_b32 {v(vL16)}, 4, {v(vLane)}
        v_lshrrev_b32 {v(vHH)}, 5, {v(vLane)}
        v_mov_b32 {v(vDiag)}, 0
        s_lshl_b32 {s(sW1k)}, {s(sW)}, 10
        s_and_b32 {s(sH)}, {s(sW1k)}, 3072
        s_lshl_b32 {s(sT32)}, {s(sX)}, 3
        s_add_u32 {s(sT32)}, {s(sT32)}, {s(sW)}
        """)
        self.stamp("start")
        self.vWd = V0 + 100; self.vXe = V0 + 101; self.vXo = V0 + 102
        self.vXr = V0 + 104
        self.vWr = V0 + 108
        A, B, C = V0, V0 + 1, V0 + 2
        a(f"""
        v_mul_u32_u24 {v(A)}, 57, {v(vLane)}
        v_lshrrev_b32 {v(A)}, 9, {v(A)}                 ; row = l/9
        v_mul_u32_u24 {v(B)}, 9, {v(A)}
        v_sub_u32 {v(B)}, {v(vLane)}, {v(B)}            ; q
        v_mul_u32_u24 {v(C)}, 11, {v(B)}
        v_lshrrev_b32 {v(C)}, 5, {v(C)}                 ; seg
        v_mul_u32_u24 {v(A)}, 3840, {v(A)}
        v_lshl_add_u32 {v(A)}, {v(B)}, 4, {v(A)}        ; + q*16
        v_mul_u32_u24 {v(C)}, {1280-48}, {v(C)}
        v_add_u32 {v(self.vWd)}, {v(A)}, {v(C)}
        v_lshrrev_b32 {v(A)}, 3, {v(vLane)}             ; r
        v_lshrrev_b32 {v(B)}, 4, {v(vLane)}             ; r>>1
        v_and_b32 {v(C)}, 7, {v(vLane)}
        v_xor_b32 {v(B)}, {v(B)}, {v(C)}
        v_mul_u32_u24 {v(A)}, 1280, {v(A)}
        v_lshl_add_u32 {v(self.vXe)}, {v(B)}, 4, {v(A)}
        v_xor_b32 {v(self.vXo)}, 64, {v(self.vXe)}
        """)
        a(f"""
        s_mul_i32 {s(t0)}, {s(sJ)}, 40
        s_and_b32 {s(t0)}, {s(t0)}, 0xfffffff0
        s_mul_i32 {s(sSoA)}, {s(sW)}, {7*3840}
        s_add_u32 {s(sSoA)}, {s(sSoA)}, {s(t0)}          ; W soffset
        s_mul_i32 {s(sM0A)}, {s(sW)}, 1008
        s_add_u32 {s(sM0A)}, {s(sM0A)}, {WIMG}           ; W lds
        s_mul_i32 {s(sSoB)}, {s(sT32)}, {32*1280}        ; x soffset
        s_lshl_b32 {s(sM0B)}, {s(sW)}, 13                ; x lds
        s_waitcnt lgkmcnt(0)
        s_mov_b32 {s(S_X)}, {s(P_X)}
        s_mov_b32 {s(S_X+1)}, {s(P_X+1)}
        s_mov_b32 {s(S_X+2)}, 2621440
        s_mov_b32 {s(S_X+3)}, 0x20000
        s_mov_b32 {s(S_WQ)}, {s(P_WQ)}
        s_mov_b32 {s(S_WQ+1)}, {s(P_WQ+1)}
        s_mov_b32 {s(S_WQ+2)}, 2457600
        s_mov_b32 {s(S_WQ+3)}, 0x20000
        s_mov_b32 {s(S_WS)}, {s(P_WS)}
        s_mov_b32 {s(S_WS+1)}, {s(P_WS+1)}
        s_mov_b32 {s(S_WS+2)}, {WS_END}
        s_mov_b32 {s(S_WS+3)}, 0x20000
        """)
        a(f"""
        s_lshl_b32 {s(t0)}, {s(sJ)}, 3
        s_add_u32 {s(t0)}, {s(t0)}, {s(sW)}
        s_lshl_b32 {s(t1)}, {s(sX)}, 8
        s_add_u32 {s(t0)}, {s(t0)}, {s(t1)}
        s_mul_i32 {s(t0)}, {s(t0)}, 1280
        v_lshlrev_b32 {v(A)}, 7, {v(vLane)}
        s_mov_b64 exec, 0x3ff
        buffer_load_dword {v(V0+110)}, {v(A)}, {s(S_X,4)}, {s(t0)} offen
        s_mov_b64 exec, -1
        """)
        self.vm.issue()
        self.wround(); self.wround()
        self.xpanel()
        L = a.newlabel("Lnoclr")
        a(f"""
        s_cmp_lg_u32 {s(sW)}, 0
        s_cbranch_scc1 {L}
        v_mov_b32 {v(V0+4)}, 0
        v_mov_b32 {v(V0+5)}, 0
        v_mov_b32 {v(V0+6)}, 0
        v_mov_b32 {v(V0+7)}, 0
        s_lshl_b32 {s(t0)}, s2, 8
        s_mov_b64 exec, 0xffff
        buffer_store_dwordx4 {v(V0+4,4)}, {v(vL16)}, {s(S_WS,4)}, {s(t0)} offen sc1
        s_mov_b64 exec, -1
        """)
        a.label(L)
        L = a.newlabel("Lnopf")
        a(f"""
        s_cmp_lg_u32 {s(sW)}, 7
        s_cbranch_scc1 {L}
        s_getpc_b64 {s(t2,2)}
        L_pc:
        s_and_b32 {s(t0)}, {s(sJ)}, 7
        s_lshl_b32 {s(t0)}, {s(t0)}, 13
        v_add_u32 {v(A)}, {s(t0)}, {v(A)}
        v_min_u32 {v(A)}, (L_codeend-L_pc-4), {v(A)}
        global_load_dword {v(V0+111)}, {v(A)}, {s(t2,2)}
        """)
        a.label(L)
        self.wround(); self.wround()
        self.xpanel()
        a(f"""
        s_mov_b32 {s(S_OUT)}, {s(P_OUT)}
        s_mov_b32 {s(S_OUT+1)}, {s(P_OUT+1)}
        s_mov_b32 {s(S_OUT+2)}, 2621440
        s_mov_b32 {s(S_OUT+3)}, 0x20000
        s_and_b32 {s(sC8)}, {s(sJ)}, 7
        s_and_b32 {s(sC16)}, {s(sJ)}, 15
        s_and_b32 {s(t0)}, {s(sW)}, 3
        s_lshr_b32 {s(t1)}, {s(sJ)}, 3
        s_lshl_b32 {s(t1)}, {s(t1)}, 2
        s_lshl_b32 {s(sT16)}, {s(sX)}, 4
        s_add_u32 {s(sT16)}, {s(sT16)}, {s(t1)}
        s_add_u32 {s(sT16)}, {s(sT16)}, {s(t0)}
        s_lshr_b32 {s(t1)}, {s(sJ)}, 4
        s_lshl_b32 {s(t1)}, {s(t1)}, 2
        s_lshl_b32 {s(sT32c)}, {s(sX)}, 3
        s_add_u32 {s(sT32c)}, {s(sT32c)}, {s(t1)}
        s_add_u32 {s(sT32c)}, {s(sT32c)}, {s(t0)}
        s_mul_i32 {s(sKV)}, {s(sJ)}, {KVH}
        s_add_u32 {s(sKV)}, {s(sKV)}, {WS_KV}
        v_add_u32 {v(vL16b)}, 0x10000, {v(vL16)}
        v_add_u32 {v(vL16c)}, 0x20000, {v(vL16)}
        v_mov_b32 {v(vIdx)}, 0xdddddddd
        """)
        self.wbase = [41, 42, 43, 63]
        a(f"""
        s_mul_i32 s41, {s(sC8)}, 102400
        s_add_u32 s41, s41, {W3P}
        s_mul_i32 s42, {s(sC16)}, 122880
        s_add_u32 s42, s42, {W4P}
        s_mul_i32 s43, {s(sC8)}, 245760
        s_add_u32 s43, s43, {W5P}
        s_mul_i32 s63, {s(sJ)}, 81920
        s_add_u32 s63, s63, {W1P}
        """)
        c0 = -2.0 * math.log2(math.e) * math.sqrt(2.0 / math.pi)
        a(f"""
        s_mov_b32 {s(sC0)}, {hexf(c0)}
        s_mov_b32 {s(sC0+1)}, {hexf(c0)}
        s_mov_b32 {s(sC1)}, {hexf(c0*0.044715)}
        s_mov_b32 {s(sC1+1)}, {hexf(c0*0.044715)}
        """)
        N, Dd, E, Fq = V0 + 8, V0 + 9, V0 + 10, V0 + 11
        a(f"""
        v_and_b32 {v(N)}, 31, {v(vLane)}                ; n / tau
        v_lshlrev_b32 {v(vF32)}, 2, {v(N)}
        v_and_b32 {v(vF16)}, 60, {v(vF32)}
        v_bfe_u32 {v(Dd)}, {v(vLane)}, 1, 3
        v_xor_b32 {v(Dd)}, {v(Dd)}, {v(vHH)}
        v_lshlrev_b32 {v(Dd)}, 4, {v(Dd)}
        v_lshl_add_u32 {v(Dd)}, {v(N)}, 7, {v(Dd)}
        v_add_u32 {v(self.vXr)}, {s(sM0B)}, {v(Dd)}
        """)
        for i in range(1, 4):
            a(f"v_xor_b32 {v(self.vXr+i)}, {32*i}, {v(self.vXr)}")
        tb = [[6, 8, 7, 9, 12, 14, 13, 15], [10, 16, 4, 4, 0, 2, 1, 3]]
        a(f"""
        v_bfe_u32 {v(Dd)}, {v(vLane)}, 2, 2             ; r
        v_lshl_add_u32 {v(Dd)}, {v(vHH)}, 3, {v(Dd)}    ; 8g + r
        v_mul_u32_u24 {v(Dd)}, 144, {v(Dd)}
        s_and_b32 {s(t0)}, {s(sJ)}, 1
        s_lshl_b32 {s(t0)}, {s(t0)}, 3
        s_add_u32 {s(t0)}, {s(t0)}, {WIMG}
        v_add_u32 {v(Dd)}, {s(t0)}, {v(Dd)}
        v_and_b32 {v(E)}, 3, {v(vLane)}
        v_lshlrev_b32 {v(E)}, 3, {v(E)}                 ; 8*c
        v_and_b32 {v(Fq)}, 16, {v(vLane)}
        v_cmp_ne_u32 vcc, 0, {v(Fq)}
        """)
        for t in range(2):
            lo = sum((tb[t][i] * 8) << (8 * i) for i in range(4))
            hi = sum((tb[t][4 + i] * 8) << (8 * i) for i in range(4))
            a(f"""
            v_mov_b32 {v(Fq)}, {hex(lo)}
            v_mov_b32 {v(Fq+1)}, {hex(hi)}
            v_cndmask_b32 {v(Fq)}, {v(Fq)}, {v(Fq+1)}, vcc
            v_bfe_u32 {v(Fq)}, {v(Fq)}, {v(E)}, 8
            v_add_u32 {v(self.vWr+t)}, {v(Dd)}, {v(Fq)}
            """)
        a(f"""
        v_and_b32 {v(Dd)}, 1, {v(vLane)}
        v_lshlrev_b32 {v(Dd)}, 4, {v(Dd)}
        v_mov_b32 {v(E)}, 0x3f80
        v_lshlrev_b32 {v(Dd)}, {v(Dd)}, {v(E)}
        v_bfe_u32 {v(E)}, {v(vLane)}, 2, 1
        v_xor_b32 {v(E)}, {v(E)}, {v(vHH)}              ; 0 when ((n>>2)&1)==g
        v_lshlrev_b32 {v(E)}, 4, {v(E)}
        v_lshrrev_b32 {v(Fq)}, 3, {v(N)}
        v_lshl_or_b32 {v(E)}, {v(Fq)}, 1, {v(E)}
        v_bfe_u32 {v(Fq)}, {v(vLane)}, 1, 1
        v_or_b32 {v(E)}, {v(E)}, {v(Fq)}                ; key
        """)
        for r in range(4):
            a(f"v_cmp_eq_u32 vcc, {r}, {v(E)}\ns_nop 1\nv_cndmask_b32 {v(SEL1+r)}, 0, {v(Dd)}, vcc")
        a(f"v_lshrrev_b32 {v(E)}, 1, {v(vLane)}")
        for r in range(2):
            a(f"v_cmp_eq_u32 vcc, {24+r}, {v(E)}\ns_nop 1\nv_cndmask_b32 {v(SEL2+r)}, 0, {v(Dd)}, vcc")
        a(f"""
        v_mov_b32 {v(E)}, {s(sOnes)}
        v_cmp_eq_u32 vcc, 20, {v(N)}
        s_nop 1
        v_cndmask_b32 {v(vOnesM)}, 0, {v(E)}, vcc
        v_and_b32 {v(Dd)}, 0x13, {v(N)}
        v_bfe_u32 {v(E)}, {v(N)}, 2, 1
        v_lshl_or_b32 {v(Dd)}, {v(E)}, 3, {v(Dd)}
        v_bfe_u32 {v(E)}, {v(N)}, 3, 1
        v_lshl_or_b32 {v(Dd)}, {v(E)}, 2, {v(Dd)}
        s_mul_i32 {s(t0)}, {s(sW)}, {TB}
        v_lshlrev_b32 {v(E)}, 9, {v(vHH)}
        v_lshl_add_u32 {v(E)}, {v(Dd)}, 4, {v(E)}
        v_add_u32 {v(vAKw)}, {s(t0)}, {v(E)}
        v_lshlrev_b32 {v(E)}, 3, {v(Dd)}
        v_add_u32 {v(vATw)}, {s(t0)}, {v(E)}
        v_min_u32 {v(Dd)}, 20, {v(N)}
        v_mul_u32_u24 {v(E)}, 336, {v(vHH)}
        v_lshl_add_u32 {v(vAVr)}, {v(Dd)}, 4, {v(E)}
        v_add_u32 {v(vAVw)}, {s(t0)}, {v(vAVr)}
        v_mul_u32_u24 {v(E)}, {TB}, {v(vHH)}
        v_lshl_add_u32 {v(vAKt)}, {v(N)}, 3, {v(E)}
        ; o offsets
        v_lshrrev_b32 {v(Dd)}, 4, {v(N)}
        v_mul_u32_u24 {v(Dd)}, 20480, {v(Dd)}
        v_lshl_add_u32 {v(Dd)}, {v(vF16)}, 2, {v(Dd)}
        s_mul_i32 {s(t0)}, {s(sT32)}, 40960
        s_add_u32 {s(t0)}, {s(t0)}, {WS_O}
        s_lshl_b32 {s(t1)}, {s(sJ)}, 9
        s_add_u32 {s(t1)}, {s(t1)}, {s(t0)}
        v_lshl_add_u32 {v(E)}, {v(vHH)}, 8, {v(Dd)}
        v_add_u32 {v(vOm)}, {s(t1)}, {v(E)}
        s_lshr_b32 {s(t1)}, {s(sJ)}, 1
        s_lshl_b32 {s(t1)}, {s(t1)}, 8
        s_and_b32 {s(t2)}, {s(sJ)}, 1
        s_lshl_b32 {s(t2)}, {s(t2)}, 3
        s_add_u32 {s(t1)}, {s(t1)}, {s(t2)}
        s_add_u32 {s(t1)}, {s(t1)}, {s(t0)}
        s_add_u32 {s(t1)}, {s(t1)}, 16384
        v_add_u32 {v(vOt)}, {s(t1)}, {v(Dd)}
        s_lshr_b32 {s(t0)}, {s(sT16)}, 1
        s_and_b32 {s(t1)}, {s(sT16)}, 1
        s_mul_i32 {s(t2)}, {s(t0)}, 40960
        s_mul_i32 {s(t3)}, {s(sC8)}, 5120
        s_add_u32 {s(t2)}, {s(t2)}, {s(t3)}
        s_lshl_b32 {s(t3)}, {s(t1)}, 8
        s_add_u32 {s(t2)}, {s(t2)}, {s(t3)}
        s_add_u32 {s(t2)}, {s(t2)}, {WS_X}
        v_lshrrev_b32 {v(Dd)}, 4, {v(vLane)}            ; q
        v_lshlrev_b32 {v(E)}, 9, {v(Dd)}
        v_lshl_add_u32 {v(E)}, {v(vF16)}, 2, {v(E)}
        v_add_u32 {v(vXm)}, {s(t2)}, {v(E)}
        v_lshlrev_b32 {v(E)}, 9, {v(vHH)}
        v_lshl_add_u32 {v(E)}, {v(vF16)}, 2, {v(E)}
        v_and_b32 {v(Fq)}, 1, {v(Dd)}
        v_lshl_add_u32 {v(E)}, {v(Fq)}, 3, {v(E)}
        s_add_u32 {s(t2)}, {s(t2)}, 4096
        v_add_u32 {v(vXt)}, {s(t2)}, {v(E)}
        s_lshl_b32 {s(t2)}, {s(sT16)}, 10
        s_lshl_b32 {s(t3)}, {s(sC8)}, 3
        s_add_u32 {s(t2)}, {s(t2)}, {s(t3)}
        s_add_u32 {s(t2)}, {s(t2)}, {STATS}
        v_lshlrev_b32 {v(E)}, 4, {v(vF16)}
        v_lshl_add_u32 {v(E)}, {v(vHH)}, 2, {v(E)}
        v_add_u32 {v(vSt)}, {s(t2)}, {v(E)}
        """)

    def wround(self):
        a = self.a
        a(f"s_mov_b32 m0, {s(sM0A)}")
        a(f"s_add_u32 {s(sM0A)}, {s(sM0A)}, 8064")
        a(f"buffer_load_dwordx4 {v(self.vWd)}, {s(S_WQ,4)}, {s(sSoA)} offen lds")
        a(f"s_add_u32 {s(sSoA)}, {s(sSoA)}, 215040")
        self.vm.issue()

    def xpanel(self):
        a = self.a
        for i in range(4):
            a(f"s_add_u32 m0, {s(sM0B)}, {i*1024}")
            a(f"s_add_u32 {s(t7)}, {s(sSoB)}, {i*10240}")
            a(f"buffer_load_dwordx4 {v(self.vXo if i & 1 else self.vXe)}, {s(S_X,4)}, {s(t7)} offen lds")
            self.vm.issue()
        a(f"s_xor_b32 {s(sM0B)}, {s(sM0B)}, 4096")
        a(f"s_add_u32 {s(sSoB)}, {s(sSoB)}, 128")

    ACC = V0
    vRstd, vNm = V0 + 32, V0 + 33
    vS, vQ = V0 + 34, V0 + 35

    def p1a(self):
        a = self.a
        ACC = self.ACC
        XF = V0 + 40
        WF = V0 + 56
        cs = V0 + 36
        for i in range(32): a(f"v_mov_b32 {v(ACC+i)}, 0")
        for r in (self.vS, self.vQ, cs, cs + 1): a(f"v_mov_b32 {v(r)}, 0")
        a(f"s_mov_b32 {s(sP)}, 0")
        a(".p2align 4")
        a.label("L_p1a")
        a(f"""
        s_waitcnt vmcnt(5)
        s_cmp_lg_u32 {s(sP)}, 36
        s_cbranch_scc1 L_p1a_w
        s_waitcnt vmcnt(0)
        """)
        a.label("L_p1a_w")
        a("s_barrier")
        for i in range(4): a(f"ds_read_b128 {v(XF+4*i,4)}, {v(self.vXr+i)}")
        def wreads(i):
            for t in range(2):
                for ab in range(2):
                    a(f"ds_read_b64_tr_b16 {v(WF+8*i+4*t+2*ab,2)}, {v(self.vWr+t)} offset:{(16*i+4*ab)*144}")
        wreads(0); wreads(1)
        a(f"""
        s_waitcnt lgkmcnt(8)
        s_cmp_ge_u32 {s(sP)}, 32
        s_cbranch_scc1 L_p1a_n
        """)
        self.xpanel(); self.wround()
        a(f"""
        s_or_b32 {s(t0)}, {s(sP)}, {s(sW)}
        s_cmp_lg_u32 {s(t0)}, 0
        s_cbranch_scc1 L_p1a_n
        s_lshl_b32 {s(t0)}, {s(sXcc)}, 3
        s_lshl_b64 {s(t2,2)}, 1, {s(t0)}
        s_lshl_b32 {s(t0)}, {s(sX)}, 3
        v_mov_b32 {v(V0+96)}, {s(t2)}
        v_mov_b32 {v(V0+97)}, {s(t3)}
        v_mov_b32 {v(V0+98)}, {s(t0)}
        s_mov_b64 exec, 1
        global_atomic_add_x2 {v(V0+98)}, {v(V0+96,2)}, {s(P_DBG,2)} sc1
        s_mov_b64 exec, -1
        """)
        a.label("L_p1a_n")
        for r in range(16):
            a(f"v_dot2c_f32_bf16 {v(self.vS)}, {s(sOnes)}, {v(XF+r)}")
            a(f"v_dot2c_f32_bf16 {v(self.vQ)}, {v(XF+r)}, {v(XF+r)}")
        for i in range(4):
            if i == 0:
                a("s_waitcnt lgkmcnt(4)"); wreads(2)
            elif i == 1:
                a("s_waitcnt lgkmcnt(4)"); wreads(3)
            elif i == 2:
                a("s_waitcnt lgkmcnt(4)")
            else:
                a("s_waitcnt lgkmcnt(0)")
            for t in range(2):
                a(f"v_mfma_f32_32x32x16_bf16 {v(ACC+16*t,16)}, {v(WF+8*i+4*t,4)}, {v(XF+4*i,4)}, {v(ACC+16*t,16)}")
            L = a.newlabel("Lcs")
            a(f"""
            s_add_u32 {s(t0)}, {s(sP)}, {i}
            s_and_b32 {s(t1)}, {s(t0)}, 7
            s_cmp_lg_u32 {s(t1)}, {s(sW)}
            s_cbranch_scc1 {L}
            """)
            for r in range(4):
                for t in range(2):
                    a(f"v_dot2c_f32_bf16 {v(cs+t)}, {s(sOnes)}, {v(WF+8*i+4*t+r)}")
            a(f"""
            s_cmp_lg_u32 {s(sX)}, {s(sW)}
            s_cbranch_scc1 {L}
            s_lshl_b32 {s(t0)}, {s(t0)}, 11
            s_add_u32 {s(t0)}, {s(t0)}, {s(self.wbase[3])}
            buffer_store_dwordx4 {v(WF+8*i,4)}, {v(vL16)}, {s(S_WS,4)}, {s(t0)} offen sc1
            buffer_store_dwordx4 {v(WF+8*i+4,4)}, {v(vL16)}, {s(S_WS,4)}, {s(t0)} offen offset:1024 sc1
            """)
            a.label(L)
        for i in range(4): a(f"v_xor_b32 {v(self.vXr+i)}, 4096, {v(self.vXr+i)}")
        for t in range(2): a(f"v_add_u32 {v(self.vWr+t)}, {64*144}, {v(self.vWr+t)}")
        a(f"""
        s_add_u32 {s(sP)}, {s(sP)}, 4
        s_cmp_lt_u32 {s(sP)}, 40
        s_cbranch_scc1 L_p1a
        """)
        self.vm.reset(); self.lg.reset()
        self.stamp("p1a_loop")
        A = V0 + 40
        a(f"""
        s_nop 1
        v_permlane32_swap_b32 {v(cs)}, {v(cs+1)}
        s_lshl_b32 {s(t0)}, {s(sW)}, 8
        s_add_u32 {s(t0)}, {s(t0)}, {CSP}
        v_add_f32 {v(cs)}, {v(cs)}, {v(cs+1)}
        v_lshlrev_b32 {v(A)}, 2, {v(vLane)}
        v_add_u32 {v(A+1)}, {s(t0)}, {v(A)}
        ds_write_b32 {v(A+1)}, {v(cs)}
        v_add_u32 {v(A+1)}, {CSP}, {v(A)}
        v_add_u32 {v(A)}, {TAB_CS1}, {v(A)}
        s_waitcnt lgkmcnt(0)
        s_barrier
        """)
        for w in range(8): a(f"ds_read_b32 {v(A+2+w)}, {v(A+1)} offset:{w*256}")
        self.finstats(self.vS, self.vQ, A + 10)
        a("s_waitcnt lgkmcnt(0)")
        for w in range(1, 8): a(f"v_add_f32 {v(A+2)}, {v(A+2)}, {v(A+2+w)}")
        a(f"ds_write_b32 {v(A)}, {v(A+2)}")
        a("s_waitcnt lgkmcnt(0)")

    def finstats(self, S, Q, tmp):
        a = self.a
        a(f"""
        v_mov_b32 {v(tmp)}, {v(S)}
        v_mov_b32 {v(tmp+1)}, {v(Q)}
        s_nop 1
        v_permlane32_swap_b32 {v(S)}, {v(tmp)}
        v_permlane32_swap_b32 {v(Q)}, {v(tmp+1)}
        v_add_f32 {v(S)}, {v(S)}, {v(tmp)}
        v_add_f32 {v(Q)}, {v(Q)}, {v(tmp+1)}
        v_mul_f32 {v(S)}, {hexf(1/640)}, {v(S)}
        v_mul_f32 {v(Q)}, {hexf(1/640)}, {v(Q)}
        v_fma_f32 {v(Q)}, -{v(S)}, {v(S)}, {v(Q)}
        v_max_f32 {v(Q)}, 0, {v(Q)}
        v_add_f32 {v(Q)}, {hexf(1e-5)}, {v(Q)}
        v_rsq_f32 {v(self.vRstd)}, {v(Q)}
        s_nop 0
        v_mul_f32 {v(self.vNm)}, -1.0, {v(self.vRstd)}
        v_mul_f32 {v(self.vNm)}, {v(S)}, {v(self.vNm)}
        """)

    def loadstats(self, sT, dst):
        a = self.a
        a(f"""
        s_lshl_b32 {s(t5)}, {s(sT)}, 11
        s_add_u32 {s(t5)}, {s(t5)}, {STATS}
        v_lshlrev_b32 {v(vT)}, 4, {v(vF32)}
        v_lshl_add_u32 {v(vT)}, {v(vHH)}, 5, {v(vT)}
        buffer_load_dwordx4 {v(dst,4)}, {v(vT)}, {s(S_WS,4)}, {s(t5)} offen sc1
        buffer_load_dwordx4 {v(dst+4,4)}, {v(vT)}, {s(S_WS,4)}, {s(t5)} offen offset:16 sc1
        """)
        self.vm.issue(); return self.vm.issue()

    def usestats(self, src):
        a = self.a
        a(f"""
        v_add_f32 {v(self.vS)}, {v(src)}, {v(src+2)}
        v_add_f32 {v(self.vQ)}, {v(src+1)}, {v(src+3)}
        v_add_f32 {v(src+4)}, {v(src+4)}, {v(src+6)}
        v_add_f32 {v(src+5)}, {v(src+5)}, {v(src+7)}
        v_add_f32 {v(self.vS)}, {v(self.vS)}, {v(src+4)}
        v_add_f32 {v(self.vQ)}, {v(self.vQ)}, {v(src+5)}
        """)
        self.finstats(self.vS, self.vQ, src)

    QM, QT = V0 + 88, V0 + 92
    OACC = V0 + 96
    SA, SB = V0 + 112, V0 + 144
    KM0, KM1, KT = V0 + 176, V0 + 180, V0 + 184
    VF = [V0 + 188, V0 + 192, V0 + 196, V0 + 200]
    aK, aT, aV = V0 + 186, V0 + 187, V0 + 204
    RL = V0 + 76
    DBG = V0 + 86

    def epi1(self):
        a = self.a
        ACC = self.ACC
        CS = V0 + 40
        rq, nq = V0 + 72, V0 + 73
        KM, VM, KVT = V0 + 40, V0 + 44, V0 + 48
        VT = self.SA
        a.label("L_epi1")
        a(f"v_lshlrev_b32 {v(vT)}, 4, {v(vHH)}")
        a(f"v_add_u32 {v(vT)}, {TAB_CS1}, {v(vT)}")
        for q in range(8): a(f"ds_read_b128 {v(CS+4*q,4)}, {v(vT)} offset:{32*q}")
        a(f"""
        v_and_b32 {v(vT)}, 7, {v(vLane)}
        v_lshlrev_b32 {v(vT)}, 3, {v(vT)}
        global_load_dwordx2 {v(self.DBG,2)}, {v(vT)}, {s(P_DBG,2)} sc1
        """)
        c = math.log2(math.e) / math.sqrt(20.0)
        a(f"v_mul_f32 {v(rq)}, {hexf(c)}, {v(self.vRstd)}")
        a(f"v_mul_f32 {v(nq)}, {hexf(c)}, {v(self.vNm)}")
        def quad(q, r, n):
            for i in range(4): a(f"v_mul_f32 {v(CS+4*q+i)}, {v(n)}, {v(CS+4*q+i)}")
            for i in range(4): a(f"v_fma_f32 {v(ACC+4*q+i)}, {v(ACC+4*q+i)}, {v(r)}, {v(CS+4*q+i)}")
        def cvt(dst, q):
            a(f"v_cvt_pk_bf16_f32 {v(dst)}, {v(ACC+4*q)}, {v(ACC+4*q+1)}")
            a(f"v_cvt_pk_bf16_f32 {v(dst+1)}, {v(ACC+4*q+2)}, {v(ACC+4*q+3)}")
        a("s_waitcnt lgkmcnt(3)")
        for q in range(5): quad(q, self.vRstd, self.vNm)
        cvt(VM, 2); cvt(VM + 2, 3); cvt(KVT, 4); cvt(KM, 0); cvt(KM + 2, 1)
        a(f"v_mfma_f32_32x32x16_bf16 {v(VT,16)}, {v(VM,4)}, {v(SEL1,4)}, 0")
        a(f"v_mfma_f32_32x32x8_bf16 {v(VT,16)}, {v(KVT,2)}, {v(SEL2,2)}, {v(VT,16)}")
        a(f"""
        s_mul_i32 {s(t0)}, {s(sX)}, {KVB}
        s_add_u32 {s(t0)}, {s(t0)}, {s(sKV)}
        buffer_store_dwordx4 {v(KM,4)}, {v(vAKw)}, {s(S_WS,4)}, {s(t0)} offen sc1
        ds_write_b128 {v(vAKw)}, {v(KM,4)}
        s_mov_b32 exec_hi, 0
        buffer_store_dwordx2 {v(KVT,2)}, {v(vATw)}, {s(S_WS,4)}, {s(t0)} offen offset:2368 sc1
        ds_write_b64 {v(vATw)}, {v(KVT,2)} offset:2368
        s_mov_b64 exec, -1
        s_waitcnt lgkmcnt(2)
        """)
        for q in range(5, 8): quad(q, rq, nq)
        VP = V0 + 52
        for i in range(8): a(f"v_cvt_pk_bf16_f32 {v(VP+i)}, {v(VT+2*i)}, {v(VT+2*i+1)}")
        for i in range(8): a(f"v_or_b32 {v(VP+i)}, {v(VP+i)}, {v(vOnesM)}")
        a(f"""
        s_mov_b32 exec_lo, 0x1fffff
        s_mov_b32 exec_hi, 0x1fffff
        buffer_store_dwordx4 {v(VP,4)}, {v(vAVw)}, {s(S_WS,4)}, {s(t0)} offen offset:1024 sc1
        buffer_store_dwordx4 {v(VP+4,4)}, {v(vAVw)}, {s(S_WS,4)}, {s(t0)} offen offset:1696 sc1
        ds_write_b128 {v(vAVw)}, {v(VP,4)} offset:1024
        ds_write_b128 {v(vAVw)}, {v(VP+4,4)} offset:1696
        s_mov_b64 exec, -1
        """)
        cvt(self.QT, 5); cvt(self.QM, 6); cvt(self.QM + 2, 7)

    def repack_issue(self):
        a = self.a
        A, B, C, Dd = V0, V0 + 1, V0 + 2, V0 + 3
        a(f"""
        s_lshl_b32 {s(sUnit)}, {s(sW)}, 8
        s_add_u32 {s(sUnit)}, {s(sUnit)}, s2
        s_min_u32 {s(sUnit)}, {s(sUnit)}, 863
        s_mov_b32 {s(S_RAW+3)}, 0x20000
        s_mul_i32 {s(sM0A)}, {s(sW)}, 6144
        s_add_u32 {s(sM0A)}, {s(sM0A)}, {RPK}
        s_cmp_lt_u32 {s(sUnit)}, 384
        s_cbranch_scc1 L_ri_w2
        s_cmp_lt_u32 {s(sUnit)}, 704
        s_cbranch_scc1 L_ri_w1
        ; ---- wo
        s_mov_b32 {s(S_RAW)}, {s(P_WO)}
        s_mov_b32 {s(S_RAW+1)}, {s(P_WO+1)}
        s_mov_b32 {s(S_RAW+2)}, 819200
        s_sub_u32 {s(t5)}, {s(sUnit)}, 704
        s_mul_i32 {s(sSoA)}, {s(t5)}, 5120
        s_add_u32 {s(sSoA)}, {s(sSoA)}, {W3P}
        s_mul_i32 {s(t4)}, {s(t5)}, 3277
        s_lshr_b32 {s(t4)}, {s(t4)}, 16              ; c
        s_mul_i32 {s(t0)}, {s(t4)}, 20
        s_sub_u32 {s(t5)}, {s(t5)}, {s(t0)}          ; s
        s_mul_i32 {s(t0)}, {s(t5)}, 40
        s_mul_i32 {s(t6)}, {s(t5)}, 160
        s_sub_u32 {s(t6)}, {s(t6)}, {16*160-16}
        s_mov_b32 {s(t1)}, 20
        s_cmp_lt_u32 {s(t5)}, 16
        s_cselect_b32 {s(t0)}, {s(t0)}, {s(t6)}
        s_cselect_b32 {s(t2)}, 4, 2
        s_cselect_b32 {s(t3)}, 15, 3
        s_branch L_ri_a
        """)
        a.label("L_ri_w2")
        a(f"""
        s_mov_b32 {s(S_RAW)}, {s(P_W2)}
        s_mov_b32 {s(S_RAW+1)}, {s(P_W2+1)}
        s_mov_b32 {s(S_RAW+2)}, 1966080
        s_mul_i32 {s(sSoA)}, {s(sUnit)}, 5120
        s_add_u32 {s(sSoA)}, {s(sSoA)}, {W5P}
        s_mul_i32 {s(t4)}, {s(sUnit)}, 1366
        s_lshr_b32 {s(t4)}, {s(t4)}, 16              ; c = u/48
        s_mul_i32 {s(t0)}, {s(t4)}, 48
        s_sub_u32 {s(t0)}, {s(sUnit)}, {s(t0)}
        s_lshl_b32 {s(t0)}, {s(t0)}, 5
        s_mov_b32 {s(t1)}, 0
        s_mov_b32 {s(t2)}, 5
        s_mov_b32 {s(t3)}, 31
        """)
        a.label("L_ri_a")
        a(f"""
        s_mul_i32 {s(t0)}, {s(t0)}, 1280
        s_mul_i32 {s(t4)}, {s(t4)}, 160
        s_add_u32 {s(t0)}, {s(t0)}, {s(t4)}
        """)
        for i in range(6):
            ii = min(i, 4)
            a(f"""
            v_add_u32 {v(A)}, {64*ii}, {v(vLane)}
            v_mul_u32_u24 {v(B)}, 6554, {v(A)}
            v_lshrrev_b32 {v(B)}, 16, {v(B)}          ; row
            v_mul_u32_u24 {v(C)}, 10, {v(B)}
            v_sub_u32 {v(A)}, {v(A)}, {v(C)}          ; piece
            v_lshrrev_b32 {v(C)}, {s(t2)}, {v(B)}
            v_and_b32 {v(B)}, {s(t3)}, {v(B)}
            v_mad_u32_u24 {v(B)}, {v(C)}, {s(t1)}, {v(B)}
            v_mul_u32_u24 {v(B)}, 1280, {v(B)}
            s_add_u32 m0, {s(sM0A)}, {ii*1024}
            v_lshl_add_u32 {v(A)}, {v(A)}, 4, {v(B)}
            buffer_load_dwordx4 {v(A)}, {s(S_RAW,4)}, {s(t0)} offen lds
            """)
        a("s_branch L_ri_e")
        a.label("L_ri_w1")
        a(f"""
        s_mov_b32 {s(S_RAW)}, {s(P_W1)}
        s_mov_b32 {s(S_RAW+1)}, {s(P_W1+1)}
        s_mov_b32 {s(S_RAW+2)}, 1966080
        s_sub_u32 {s(t5)}, {s(sUnit)}, 384
        s_mul_i32 {s(sSoA)}, {s(t5)}, 6144
        s_add_u32 {s(sSoA)}, {s(sSoA)}, {W4P}
        s_mul_i32 {s(sSoB)}, {s(t5)}, 384
        s_add_u32 {s(sSoB)}, {s(sSoB)}, {CS4P}
        s_mul_i32 {s(t4)}, {s(t5)}, 3277
        s_lshr_b32 {s(t4)}, {s(t4)}, 16              ; c
        s_mul_i32 {s(t0)}, {s(t4)}, 20
        s_sub_u32 {s(t0)}, {s(t5)}, {s(t0)}          ; sp
        s_mul_i32 {s(t0)}, {s(t0)}, {32*3072}
        s_mul_i32 {s(t4)}, {s(t4)}, 192
        s_add_u32 {s(t0)}, {s(t0)}, {s(t4)}
        """)
        for i in range(6):
            a(f"""
            v_add_u32 {v(A)}, {64*i}, {v(vLane)}
            v_mul_u32_u24 {v(B)}, 5462, {v(A)}
            v_lshrrev_b32 {v(B)}, 16, {v(B)}          ; row = p/12
            v_mul_u32_u24 {v(B)}, {3072-192}, {v(B)}
            s_add_u32 m0, {s(sM0A)}, {i*1024}
            v_lshl_add_u32 {v(A)}, {v(A)}, 4, {v(B)}
            buffer_load_dwordx4 {v(A)}, {s(S_RAW,4)}, {s(t0)} offen lds
            """)
        a.label("L_ri_e")
        a(f"""
        v_and_b32 {v(A)}, 15, {v(vLane)}
        v_mul_u32_u24 {v(A)}, 1280, {v(A)}
        v_lshrrev_b32 {v(B)}, 4, {v(vLane)}
        v_lshl_add_u32 {v(C)}, {v(B)}, 3, {v(A)}
        v_lshl_add_u32 {v(A)}, {v(B)}, 4, {v(A)}
        s_mul_i32 {s(t0)}, {s(sT16)}, {16*1280}
        s_mul_i32 {s(t1)}, {s(sC8)}, 160
        s_add_u32 {s(t0)}, {s(t0)}, {s(t1)}
        buffer_load_dwordx4 {v(self.RL,4)}, {v(A)}, {s(S_X,4)}, {s(t0)} offen
        buffer_load_dwordx4 {v(self.RL+4,4)}, {v(A)}, {s(S_X,4)}, {s(t0)} offen offset:64
        buffer_load_dwordx2 {v(self.RL+8,2)}, {v(C)}, {s(S_X,4)}, {s(t0)} offen offset:128
        """)

    def unpack_add(self, src, add):
        a = self.a
        for i in range(10):
            if add:
                a(f"v_lshlrev_b32 {v(vT)}, 16, {v(src+i)}")
                a(f"v_add_f32 {v(RES+2*i)}, {v(RES+2*i)}, {v(vT)}")
                a(f"v_and_b32 {v(vT)}, 0xffff0000, {v(src+i)}")
                a(f"v_add_f32 {v(RES+2*i+1)}, {v(RES+2*i+1)}, {v(vT)}")
            else:
                a(f"v_lshlrev_b32 {v(RES+2*i)}, 16, {v(src+i)}")
                a(f"v_and_b32 {v(RES+2*i+1)}, 0xffff0000, {v(src+i)}")

    def repack_do(self):
        a = self.a
        A, B, C = V0, V0 + 1, V0 + 2
        FR = V0 + 8
        cs = V0 + 4
        a("s_waitcnt vmcnt(0)")
        self.unpack_add(self.RL, False)
        a(f"""
        s_lshl_b32 {s(t0)}, {s(sW)}, 8
        s_add_u32 {s(t0)}, {s(t0)}, s2
        s_cmp_ge_u32 {s(t0)}, 864
        s_cbranch_scc1 L_rd_e
        s_cmp_lt_u32 {s(sUnit)}, 384
        s_cbranch_scc1 L_rd_a
        s_cmp_lt_u32 {s(sUnit)}, 704
        s_cbranch_scc1 L_rd_b
        """)
        a.label("L_rd_a")
        a(f"""
        v_lshrrev_b32 {v(A)}, 4, {v(vLane)}
        v_bfe_u32 {v(B)}, {v(vLane)}, 2, 2
        v_lshl_add_u32 {v(A)}, {v(A)}, 3, {v(B)}
        v_mul_u32_u24 {v(A)}, 160, {v(A)}
        v_add_u32 {v(A)}, {s(sM0A)}, {v(A)}
        v_and_b32 {v(C)}, 3, {v(vLane)}
        v_lshl_add_u32 {v(B)}, {v(C)}, 3, {v(A)}
        v_lshl_add_u32 {v(A)}, {v(C)}, 4, {v(A)}
        """)
        for t in range(5):
            for ab in range(2):
                if t < 4: a(f"ds_read_b64_tr_b16 {v(FR+4*t+2*ab,2)}, {v(A)} offset:{64*(t>>1)+8*(t&1)+ab*640}")
                else: a(f"ds_read_b64_tr_b16 {v(FR+4*t+2*ab,2)}, {v(B)} offset:{128+ab*640}")
        a(f"s_add_u32 {s(t0)}, {s(sSoA)}, 4096")
        a("s_waitcnt lgkmcnt(0)")
        for t in range(4): a(f"buffer_store_dwordx4 {v(FR+4*t,4)}, {v(vL16)}, {s(S_WS,4)}, {s(sSoA)} offen offset:{1024*t} sc1")
        a(f"buffer_store_dwordx4 {v(FR+16,4)}, {v(vL16)}, {s(S_WS,4)}, {s(t0)} offen sc1")
        a("s_branch L_rd_e")
        a.label("L_rd_b")
        a(f"""
        v_bfe_u32 {v(B)}, {v(vLane)}, 2, 2
        v_lshl_add_u32 {v(A)}, {v(vHH)}, 3, {v(B)}
        v_mul_u32_u24 {v(A)}, 192, {v(A)}
        v_add_u32 {v(A)}, {s(sM0A)}, {v(A)}
        v_bfe_u32 {v(B)}, {v(vLane)}, 4, 1
        v_lshl_add_u32 {v(A)}, {v(B)}, 5, {v(A)}
        v_and_b32 {v(B)}, 1, {v(vLane)}
        v_lshl_add_u32 {v(A)}, {v(B)}, 4, {v(A)}
        v_bfe_u32 {v(B)}, {v(vLane)}, 1, 1
        v_lshl_add_u32 {v(A)}, {v(B)}, 3, {v(A)}
        """)
        for k in range(2):
            for t in range(3):
                for ab in range(2):
                    a(f"ds_read_b64_tr_b16 {v(FR+12*k+4*t+2*ab,2)}, {v(A)} offset:{k*16*192+ab*4*192+64*t}")
        for t in range(3): a(f"v_mov_b32 {v(cs+t)}, 0")
        a(f"s_add_u32 {s(t0)}, {s(sSoA)}, 4096")
        a("s_waitcnt lgkmcnt(0)")
        for f in range(6):
            so, off = (sSoA, 1024 * f) if f < 4 else (t0, 1024 * (f - 4))
            a(f"buffer_store_dwordx4 {v(FR+4*f,4)}, {v(vL16)}, {s(S_WS,4)}, {s(so)} offen offset:{off} sc1")
        for k in range(2):
            for r in range(4):
                for t in range(3):
                    a(f"v_dot2c_f32_bf16 {v(cs+t)}, {s(sOnes)}, {v(FR+12*k+4*t+r)}")
        a(f"""
        s_nop 2
        v_mov_b32 {v(cs+3)}, {v(cs+2)}
        v_lshlrev_b32 {v(A)}, 2, {v(vLane)}
        s_nop 0
        v_permlane32_swap_b32 {v(cs)}, {v(cs+1)}
        v_permlane32_swap_b32 {v(cs+2)}, {v(cs+3)}
        v_add_f32 {v(cs)}, {v(cs)}, {v(cs+1)}
        v_add_f32 {v(cs+2)}, {v(cs+2)}, {v(cs+3)}
        buffer_store_dword {v(cs)}, {v(A)}, {s(S_WS,4)}, {s(sSoB)} offen sc1
        buffer_store_dword {v(cs+2)}, {v(vF32)}, {s(S_WS,4)}, {s(sSoB)} offen offset:256 sc1
        """)
        a.label("L_rd_e")

    SCHED = {1: ["z0", "rk0"], 4: ["w1", "s3p", "rv3"], 7: ["z1", "rk1"], 11: ["s0", "rv0"],
             15: ["w1", "2bc", "rkt"], 23: ["s1", "rv1"], 28: ["s2", "rv2"]}

    def stepaddr(self, n):
        return ((n >> 2) & 3) * KVB + (n & 3) * 2 * TB

    def att_ops(self, n, X, Y, base):
        o0 = self.stepaddr(n) - base
        o1 = self.stepaddr(n + 1) - base
        o2 = self.stepaddr(n + 2) - base
        VF, O = self.VF, self.OACC
        sm = lambda vf, p: f"v_smfmac_f32_32x32x32_bf16 {v(O,16)}, {v(vf,4)}, {v(p,8)}, {v(vIdx)}"
        return {
            "z0": f"v_mfma_f32_32x32x16_bf16 {v(Y,16)}, {v(self.KM0,4)}, {v(self.QM,4)}, 0",
            "z1": f"v_mfma_f32_32x32x16_bf16 {v(Y+16,16)}, {v(self.KM1,4)}, {v(self.QM,4)}, 0",
            "2bc": f"v_mfma_f32_32x32x4_2b_bf16 {v(Y,32)}, {v(self.KT,2)}, {v(self.QT,2)}, {v(Y,32)}",
            "s0": sm(VF[0], X), "s1": sm(VF[1], X + 8), "s2": sm(VF[2], X + 16), "s3p": sm(VF[3], Y + 24),
            "rk0": (self.KM0, 4, self.aK, o2), "rk1": (self.KM1, 4, self.aK, o2 + TB),
            "rkt": (self.KT, 2, self.aT, o2 + 2368),
            "rv0": (VF[0], 4, self.aV, o1 + 1024), "rv1": (VF[1], 4, self.aV, o1 + 1696),
            "rv2": (VF[2], 4, self.aV, o1 + TB + 1024), "rv3": (VF[3], 4, self.aV, o0 + TB + 1696),
            "w1": "s_waitcnt lgkmcnt(1)",
        }

    def dsr(self, op):
        d, n, ar, off = op
        assert 0 <= off < 65536, off
        self.a(f"ds_read_b{32*n} {v(d,n)}, {v(ar)} offset:{off}")

    def att_segment(self, n0, n1, hooks):
        a = self.a
        def emit(x):
            if isinstance(x, str): a(x); return
            d, n, ar, off = x
            if off >= 2 * KVB:
                ar, off = self.hi[ar], off - 2 * KVB
            self.dsr((d, n, ar, off))
        buf = lambda n: self.SA if n % 2 == 0 else self.SB
        p = self.att_ops(n0 - 2, buf(n0), buf(n0 + 1), 0)
        for k in ("rk0", "rk1", "rkt"): emit(p[k])
        p = self.att_ops(n0 - 1, buf(n0 - 1), buf(n0), 0)
        for k in ("rv0", "rv1", "rv2"): emit(p[k])
        a("s_waitcnt lgkmcnt(3)")
        emit(p["z0"]); emit(p["z1"]); emit(p["rk0"]); emit(p["rk1"])
        a("s_nop 7")
        emit(p["2bc"]); emit(p["rkt"])
        a("s_waitcnt lgkmcnt(0)")
        a("s_nop 15\ns_nop 1")
        for n in range(n0, n1):
            if n in hooks: hooks[n]()
            ops = self.att_ops(n, buf(n), buf(n + 1), 0)
            last, last2 = n == n1 - 1, n >= n1 - 2
            for e in range(32):
                for x in self.SCHED.get(e, []):
                    if n == n0 and x == "s3p": continue
                    if last and x in ("z0", "z1", "2bc", "rv0", "rv1", "rv2"): continue
                    if last2 and x in ("rk0", "rk1", "rkt"): continue
                    if x == "w1" and last2: a("s_waitcnt lgkmcnt(0)"); continue
                    emit(ops[x])
                a(f"v_exp_f32 {v(buf(n)+e)}, {v(buf(n)+e)}")
        a("s_nop 1")
        emit(self.att_ops(n1, buf(n1), buf(n1 + 1), 0)["s3p"])

    def kv_dma(self, b):
        a = self.a
        a(f"""
        s_add_u32 {s(t0)}, {s(sX)}, {b}
        s_and_b32 {s(t0)}, {s(t0)}, 7
        s_lshl_b32 {s(t0)}, {s(t0)}, 3
        s_add_u32 {s(t0)}, {s(t0)}, {s(sW)}
        s_mul_i32 {s(t0)}, {s(t0)}, {TB}
        s_mul_i32 {s(t1)}, {s(sW)}, {TB}
        s_add_u32 m0, {s(t1)}, {(b&3)*KVB}
        s_add_u32 {s(t0)}, {s(t0)}, {s(sKV)}
        """)
        for off in (0, 1024, 1600):
            a(f"buffer_load_dwordx4 {v(vL16)}, {s(S_WS,4)}, {s(t0)} offen offset:{off} sc1 lds")
            tk = self.vm.issue()
        return tk

    def attention(self):
        a = self.a
        self.hi = {self.aK: V0 + 205, self.aT: V0 + 206, self.aV: V0 + 207}
        a(f"""
        v_mov_b32 {v(self.aK)}, {v(vL16)}
        v_mov_b32 {v(self.aT)}, {v(vAKt)}
        v_mov_b32 {v(self.aV)}, {v(vAVr)}
        v_add_u32 {v(self.hi[self.aK])}, {2*KVB}, {v(vL16)}
        v_add_u32 {v(self.hi[self.aT])}, {2*KVB}, {v(vAKt)}
        v_add_u32 {v(self.hi[self.aV])}, {2*KVB}, {v(vAVr)}
        """)
        for i in range(16): a(f"v_mov_b32 {v(self.OACC+i)}, 0")
        a(f"""
        s_lshr_b32 {s(t0)}, {s(sW)}, 2
        s_or_b32 {s(t0)}, {s(t0)}, {s(sLayer)}
        s_cmp_lg_u32 {s(t0)}, 0
        s_cbranch_scc1 L_norp1
        """)
        self.repack_issue()
        a.label("L_norp1")
        a("s_waitcnt lgkmcnt(0)\ns_barrier")
        self.stamp("att_start")

        def hook1():
            L1, L2, L3 = a.newlabel("Lh"), a.newlabel("Lh"), a.newlabel("Lh")
            a(f"""
            s_lshr_b32 {s(t0)}, {s(sW)}, 2
            s_or_b32 {s(t0)}, {s(t0)}, {s(sLayer)}
            s_cmp_eq_u32 {s(t0)}, 0
            s_waitcnt vmcnt(9)
            s_cbranch_scc1 {L1}
            s_waitcnt vmcnt(0)
            """)
            a.label(L1)
            a(f"s_cmp_lg_u32 {s(sLayer)}, 0\ns_cbranch_scc1 {L2}")
            D = self.DBG
            LA, LB = a.newlabel("Lchk"), a.newlabel("Lchk")
            a.label(LA)
            a(f"""
            v_sad_u8 {v(vT)}, {v(D)}, 0, 0
            v_sad_u8 {v(vT)}, {v(D+1)}, 0, {v(vT)}
            v_cmp_ne_u32 vcc, 32, {v(vT)}
            s_cbranch_vccz {LB}
            v_and_b32 {v(vT)}, 7, {v(vLane)}
            v_lshlrev_b32 {v(vT)}, 3, {v(vT)}
            global_load_dwordx2 {v(D,2)}, {v(vT)}, {s(P_DBG,2)} sc1
            s_waitcnt vmcnt(0)
            s_sub_u32 {s(sSpin)}, {s(sSpin)}, 1
            s_cbranch_scc0 {LA}
            s_mov_b32 {s(sSpin)}, 0
            """)
            a.label(LB)
            a(f"""
            v_readlane_b32 {s(t2)}, {v(D)}, {s(sX)}
            v_readlane_b32 {s(t3)}, {v(D+1)}, {s(sX)}
            s_lshl_b32 {s(t0)}, {s(sXcc)}, 3
            s_nop 1
            s_lshr_b64 {s(t2,2)}, {s(t2,2)}, {s(t0)}
            s_and_b32 {s(t2)}, {s(t2)}, 0xff
            s_cmp_eq_u32 {s(t2)}, 32
            s_cselect_b32 {s(sFast)}, {0 if self.force_safe else 1}, 0
            """)
            a.label(L2)
            a(f"s_barrier\ns_cmp_lg_u32 {s(sW)}, 7\ns_cbranch_scc1 {L3}")
            a(f"""
            s_lshl_b32 {s(t0)}, {s(sJ)}, 3
            s_add_u32 {s(t0)}, {s(t0)}, {s(sX)}
            s_lshl_b32 {s(t0)}, {s(t0)}, 7
            s_add_u32 {s(t0)}, {s(t0)}, {FKV}
            s_add_u32 {s(t1)}, {s(sLayer)}, 1
            """)
            self.flagstore(t0, s(t1), "sc1", V0, V0 + 1)
            a.label(L3)
        self.att_segment(0, 4, {1: hook1})
        self.stamp("att_b0")
        a(f"""
        s_lshr_b32 {s(t0)}, {s(sW)}, 2
        s_or_b32 {s(t0)}, {s(t0)}, {s(sLayer)}
        s_cmp_lg_u32 {s(t0)}, 0
        s_cbranch_scc1 L_norp2
        """)
        self.repack_do()
        a.label("L_norp2")
        a(f"""
        v_and_b32 {v(V0)}, 7, {v(vLane)}
        v_lshlrev_b32 {v(V0)}, 7, {v(V0)}
        s_lshl_b32 {s(t0)}, {s(sJ)}, 10
        s_add_u32 {s(t0)}, {s(t0)}, {FKV}
        s_add_u32 {s(t1)}, {s(sLayer)}, 1
        """)
        self.poll(V0, t0, s(t1), V0 + 1)
        self.stamp("att_kvflag")
        tk = {}
        tk[1] = self.kv_dma(1); tk[2] = self.kv_dma(2)
        self.wait(vt=tk[1])
        a("s_barrier")
        L = a.newlabel("Larr")
        a(f"""
        s_or_b32 {s(t0)}, {s(sW)}, {s(sLayer)}
        s_cmp_lg_u32 {s(t0)}, 0
        s_cbranch_scc1 {L}
        s_lshl_b32 {s(t0)}, {s(sX)}, 2
        v_mov_b32 {v(V0)}, {s(t0)}
        v_mov_b32 {v(V0+1)}, 1
        s_mov_b64 exec, 1
        global_atomic_add {v(V0)}, {v(V0+1)}, {s(P_DBG,2)} offset:128 sc1
        s_mov_b64 exec, -1
        """)
        a.label(L)
        self.stamp("att_b1")
        hooks = {}
        def mk_start(b):
            def h(): tk[b + 2] = self.kv_dma(b + 2)
            return h
        def mk_bar(b):
            def h():
                if b == 4:
                    L0, L1 = a.newlabel("Lrp"), a.newlabel("Lrp")
                    a(f"s_cmp_lg_u32 {s(sLayer)}, 0\ns_cbranch_scc1 {L1}")
                    a(f"v_and_b32 {v(V0)}, 28, {v(vF32)}")
                    a.label(L0)
                    a(f"""
                    global_load_dword {v(V0+1)}, {v(V0)}, {s(P_DBG,2)} offset:128 sc1
                    s_waitcnt vmcnt(0)
                    v_cmp_ne_u32 vcc, 32, {v(V0+1)}
                    s_cbranch_vccz {L1}
                    s_sub_u32 {s(sSpin)}, {s(sSpin)}, 1
                    s_cbranch_scc0 {L0}
                    s_mov_b32 {s(sSpin)}, 0
                    """)
                    a.label(L1)
                if b + 1 in tk: self.wait(vt=tk[b + 1])
                a("s_barrier")
                rng = {4: (0, 40), 5: (40, 96), 6: (96, 118), 7: (118, 138)}.get(b)
                if rng: self.dma_run(rng[0], rng[1], 8, sW1k)
                if b in (5, 6): self.l2pf([W4P, W5P][b - 5], 1966080)
            return h
        for b in range(1, 8):
            if b <= 5: hooks[4 * b] = mk_start(b)
            hooks[4 * b + 2] = mk_bar(b)
        self.att_segment(4, 32, hooks)
        self.stamp("att_end")
        O = self.OACC
        Z = V0
        a.label("L_att_fin")
        a(f"s_nop 11\nv_mul_f32 {v(Z)}, 0, {v(O)}")
        for i in range(1, 12): a(f"v_fma_f32 {v(Z)}, {v(O+i)}, 0, {v(Z)}")
        a(f"""
        v_add_f32 {v(Z)}, {v(Z)}, {v(O+12)}
        v_cmp_nle_f32 vcc, {hexf(2.0**-16)}, {v(Z)}
        s_mov_b64 {s(sEx,2)}, vcc
        v_cmp_nge_f32 vcc, {hexf(2.0**64)}, {v(Z)}
        s_or_b64 vcc, vcc, {s(sEx,2)}
        """)
        if self.force_slow: a("s_branch L_slow")
        a("s_cbranch_vccnz L_slow")
        a.label("L_att_norm")
        a(f"v_rcp_f32 {v(Z)}, {v(O+12)}\ns_nop 0")
        for i in range(12): a(f"v_mul_f32 {v(O+i)}, {v(O+i)}, {v(Z)}")
        P = V0 + 4
        for i in range(6): a(f"v_cvt_pk_bf16_f32 {v(P+i)}, {v(O+2*i)}, {v(O+2*i+1)}")
        a(f"""
        s_lshl_b32 {s(t0)}, {s(sT32)}, 7
        s_lshl_b32 {s(t1)}, {s(sJ)}, 2
        s_add_u32 {s(t0)}, {s(t0)}, {s(t1)}
        s_add_u32 {s(t1)}, {s(sLayer)}, 1
        """)
        def em(fl):
            a(f"""
            buffer_store_dwordx4 {v(P,4)}, {v(vOm)}, {s(S_WS,4)}, 0 offen {fl}
            s_mov_b32 exec_hi, 0
            buffer_store_dwordx2 {v(P+4,2)}, {v(vOt)}, {s(S_WS,4)}, 0 offen {fl}
            s_mov_b64 exec, -1
            s_waitcnt vmcnt(0)
            """)
            self.flagstore(t0, s(t1), fl, V0, V0 + 1)
        self.dual(em)
        self.vm.reset()
        a("s_barrier")
        self.stamp("att_pub")

    def l2pf(self, base, size):
        a = self.a
        a(f"""
        s_lshl_b32 {s(t0)}, {s(sJ)}, 3
        s_add_u32 {s(t0)}, {s(t0)}, {s(sW)}
        s_min_u32 {s(t0)}, {s(t0)}, {size//8192 - 1}
        s_lshl_b32 {s(t0)}, {s(t0)}, 13
        s_add_u32 {s(t0)}, {s(t0)}, {base}
        v_lshlrev_b32 {v(V0+2)}, 7, {v(vLane)}
        buffer_load_dword {v(V0+3)}, {v(V0+2)}, {s(S_WS,4)}, {s(t0)} offen sc1
        """)
        self.vm.issue()

    def slowpath(self):
        a = self.a
        S, O, M = self.SA, self.OACC, V0
        a.label("L_slow")
        a(f"s_waitcnt vmcnt(0) lgkmcnt(0)\nv_mov_b32 {v(M)}, 0xff800000")
        for ps in range(2):
            L = f"L_slow{ps}"
            a(f"s_mov_b32 {s(t0)}, {s(sKV)}\ns_mov_b32 {s(t1)}, 32")
            if ps == 1:
                for i in range(16): a(f"v_mov_b32 {v(O+i)}, 0")
            a.label(L)
            a(f"""
            s_add_u32 {s(t2)}, {s(t0)}, {TB}
            buffer_load_dwordx4 {v(self.KM0,4)}, {v(vL16)}, {s(S_WS,4)}, {s(t0)} offen sc1
            buffer_load_dwordx4 {v(self.KM1,4)}, {v(vL16)}, {s(S_WS,4)}, {s(t2)} offen sc1
            buffer_load_dwordx2 {v(self.KT,2)}, {v(vAKt)}, {s(S_WS,4)}, {s(t0)} offen offset:2368 sc1
            """)
            if ps == 1:
                for f in range(4):
                    a(f"buffer_load_dwordx4 {v(self.VF[f],4)}, {v(vAVr)}, {s(S_WS,4)}, {s(t2 if f >= 2 else t0)} offen offset:{1024+672*(f&1)} sc1")
            ops = self.att_ops(0, self.SB, S, 0)
            a("s_waitcnt vmcnt(0)")
            a(ops["z0"]); a(ops["z1"]); a("s_nop 9"); a(ops["2bc"]); a("s_nop 15\ns_nop 3")
            if ps == 0:
                for i in range(16): a(f"v_max3_f32 {v(M)}, {v(S+2*i)}, {v(S+2*i+1)}, {v(M)}")
            else:
                for i in range(32): a(f"v_sub_f32 {v(S+i)}, {v(S+i)}, {v(M)}")
                for i in range(32): a(f"v_exp_f32 {v(S+i)}, {v(S+i)}")
                a("s_nop 1")
                for f in range(4):
                    a(f"v_smfmac_f32_32x32x32_bf16 {v(O,16)}, {v(self.VF[f],4)}, {v(S+8*f,8)}, {v(vIdx)}")
                a("s_nop 7")
            a(f"""
            s_add_u32 {s(t0)}, {s(t0)}, {2*TB}
            s_sub_u32 {s(t1)}, {s(t1)}, 1
            s_cmp_lg_u32 {s(t1)}, 0
            s_cbranch_scc1 {L}
            """)
            if ps == 0:
                a(f"""
                v_mov_b32 {v(M+1)}, {v(M)}
                s_nop 1
                v_permlane32_swap_b32 {v(M)}, {v(M+1)}
                v_max_f32 {v(M)}, {v(M)}, {v(M+1)}
                """)
        a("s_nop 7\ns_branch L_att_norm")

    def gemm(self, nk, nt, n0, mf, acc, accn, AB, BB, depth, sBase, bars, pre_reads_done, extra=None, zero_first=False):
        a = self.a
        lt, vt = self.g_lt, {}
        def bload(k):
            if k and k % 4 == 0: a(f"s_add_u32 {s(sBase)}, {s(sBase)}, 4096")
            a(f"buffer_load_dwordx4 {v(BB+4*(k%depth),4)}, {v(vL16)}, {s(S_WS,4)}, {s(sBase)} offen offset:{(k%4)*1024} sc1")
            vt[k] = self.vm.issue()
        for k in range(min(depth - 1, nk)): bload(k)
        if extra and -1 in extra: extra[-1]()
        for k in range(nk):
            self.wait(vt=vt[k], lt=lt[k])
            if k in bars: a("s_barrier")
            for t in range(nt):
                c = "0" if (zero_first and k == 0) else v(acc + accn * t, accn)
                a(f"{mf} {v(acc+accn*t,accn)}, {v(AB+4*(nt*(k%3)+t),4)}, {v(BB+4*(k%depth),4)}, {c}")
                if k + 2 < nk: self.aread(k + 2, t, nt, n0, AB)
                if t == 0 and k + depth - 1 < nk: bload(k + depth - 1)
            if extra and k in extra: extra[k]()

    def aread(self, k, t, nt, n0, AB):
        ar, off = self.ldsaddr(slot(n0 + nt * k + t) * 1024)
        self.a(f"ds_read_b128 {v(AB+4*(nt*(k%3)+t),4)}, {v(ar)} offset:{off}")
        self.g_lt[k] = self.lg.issue()

    def gemm_pre(self, nt, n0, AB):
        self.g_lt = {}
        self.lg.reset()
        for k in range(2):
            for t in range(nt): self.aread(k, t, nt, n0, AB)

    MF16 = "v_mfma_f32_16x16x32_bf16"
    MF32 = "v_mfma_f32_32x32x16_bf16"

    def publish_x(self, valexpr):
        a = self.a
        P = V0
        S, Q = V0 + 12, V0 + 14
        a("s_nop 5")
        for i in range(10): a(f"v_cvt_pk_bf16_f32 {v(P+i)}, {v(RES+2*i)}, {v(RES+2*i+1)}")
        a(f"""
        s_lshr_b32 {s(t0)}, {s(sT16)}, 1
        s_lshl_b32 {s(t0)}, {s(t0)}, 7
        s_and_b32 {s(t1)}, {s(sT16)}, 1
        s_lshl_b32 {s(t1)}, {s(t1)}, 2
        s_add_u32 {s(t0)}, {s(t0)}, {s(t1)}
        s_lshl_b32 {s(t1)}, {s(sC8)}, 3
        s_add_u32 {s(t0)}, {s(t0)}, {s(t1)}
        s_add_u32 {s(t0)}, {s(t0)}, {FX}
        """)
        def em(fl):
            a(f"""
            buffer_store_dwordx4 {v(P,4)}, {v(vXm)}, {s(S_WS,4)}, 0 offen {fl}
            buffer_store_dwordx4 {v(P+4,4)}, {v(vXm)}, {s(S_WS,4)}, 0 offen offset:2048 {fl}
            buffer_store_dwordx2 {v(P+8,2)}, {v(vXt)}, {s(S_WS,4)}, 0 offen {fl}
            v_pk_add_f32 {v(S,2)}, {v(RES,2)}, {v(RES+2,2)}
            v_pk_mul_f32 {v(Q,2)}, {v(RES,2)}, {v(RES,2)}
            v_pk_fma_f32 {v(Q,2)}, {v(RES+2,2)}, {v(RES+2,2)}, {v(Q,2)}
            """)
            for i in range(2, 10):
                a(f"v_pk_add_f32 {v(S,2)}, {v(S,2)}, {v(RES+2*i,2)}")
                a(f"v_pk_fma_f32 {v(Q,2)}, {v(RES+2*i,2)}, {v(RES+2*i,2)}, {v(Q,2)}")
            a(f"""
            v_add_f32 {v(S)}, {v(S)}, {v(S+1)}
            v_add_f32 {v(Q)}, {v(Q)}, {v(Q+1)}
            s_nop 1
            v_permlane32_swap_b32 {v(S)}, {v(Q)}
            v_add_f32 {v(S)}, {v(S)}, {v(Q)}
            v_mov_b32 {v(Q)}, {v(S)}
            s_nop 1
            v_permlane16_swap_b32 {v(S)}, {v(Q)}
            v_add_f32 {v(S)}, {v(S)}, {v(Q)}
            buffer_store_dword {v(S)}, {v(vSt)}, {s(S_WS,4)}, 0 offen {fl}
            s_barrier
            s_waitcnt vmcnt(0)
            """)
            self.flagstore(t0, valexpr, fl, V0 + 16, V0 + 17)
        self.dual(em)
        self.vm.reset()

    P5BARS = [5, 13, 21, 29, 37]

    def chain_compute(self):
        a = self.a
        AB, BB = V0 + 40, V0 + 100
        sB = sSoB
        a("s_setprio 1")
        self.gemm_pre(5, N3, AB)
        a(f"""
        s_lshr_b32 {s(t0)}, {s(sT16)}, 1
        s_lshl_b32 {s(t0)}, {s(t0)}, 7
        s_add_u32 {s(t1)}, {s(sLayer)}, 1
        s_mul_i32 {s(sB)}, {s(sT16)}, 20480
        s_add_u32 {s(sB)}, {s(sB)}, {WS_O}
        """)
        self.poll(vF32, t0, s(t1), V0)
        self.stamp("p3_flag")
        self.gemm(20, 5, N3, self.MF16, RES, 4, AB, BB, 12, sB, set(), True)
        self.stamp("p3_loop")
        a(f"s_lshl_b32 {s(t2)}, {s(sLayer)}, 1\ns_add_u32 {s(t2)}, {s(t2)}, 1")
        self.publish_x(s(t2))
        self.stamp("p3_pub")
        if self.stop == "p3": a("s_branch L_done")
        ACC = V0 + 152
        ST = V0
        self.gemm_pre(3, N4, AB)
        a(f"""
        v_lshrrev_b32 {v(V0+8)}, 4, {v(vLane)}
        s_mul_i32 {s(t1)}, {s(sC8)}, 160
        v_lshl_add_u32 {v(V0+9)}, {v(V0+8)}, 3, {s(t1)}
        v_lshl_add_u32 {v(V0+8)}, {v(V0+8)}, 4, {s(t1)}
        global_load_dwordx4 {v(V0+12,4)}, {v(V0+8)}, {s(P_B2,2)}
        global_load_dwordx4 {v(V0+16,4)}, {v(V0+8)}, {s(P_B2,2)} offset:64
        global_load_dwordx2 {v(V0+20,2)}, {v(V0+9)}, {s(P_B2,2)} offset:128
        s_lshl_b32 {s(t0)}, {s(sT32c)}, 7
        s_add_u32 {s(t0)}, {s(t0)}, {FX}
        s_mul_i32 {s(sB)}, {s(sT32c)}, 40960
        s_add_u32 {s(sB)}, {s(sB)}, {WS_X}
        """)
        self.poll(vF16, t0, s(t2), V0)
        self.stamp("p4_flag")
        tks = {}
        def ld(): tks["s"] = self.loadstats(sT32c, ST)
        def us():
            self.wait(vt=tks["s"]); self.usestats(ST)
        def b2(): self.unpack_add(V0 + 12, True)
        self.gemm(40, 3, N4, self.MF32, ACC, 16, AB, BB, 12, sB, {17}, True, extra={-1: ld, 14: us, 20: b2}, zero_first=True)
        a("s_barrier")
        self.stamp("p4_loop")
        TC, TBb = V0 + 40, V0 + 56
        a(f"v_lshlrev_b32 {v(vT)}, 4, {v(vHH)}\nv_add_u32 {v(vT)}, {TAB_CS4}, {v(vT)}")
        self.lg.reset()
        tl = {}
        def tabs(t):
            o = 32 * (t & 1)
            for u in range(4):
                a(f"ds_read_b128 {v(TC+o+4*u,4)}, {v(vT)} offset:{(32*t+8*u)*4}"); self.lg.issue()
                a(f"ds_read_b128 {v(TBb+o+4*u,4)}, {v(vT)} offset:{(32*t+8*u)*4+TAB_B1-TAB_CS4}"); tl[t] = self.lg.issue()
        tabs(0)
        HO = V0 + 2
        a(f"""
        v_mov_b32 {v(V0+4)}, {s(sC0)}
        v_mov_b32 {v(V0+5)}, {s(sC0)}
        v_bfe_u32 {v(HO)}, {v(vLane)}, 4, 1
        v_mul_u32_u24 {v(HO)}, 49152, {v(HO)}
        v_lshl_add_u32 {v(HO)}, {v(vF16)}, 2, {v(HO)}
        v_lshl_add_u32 {v(HO)}, {v(vHH)}, 8, {v(HO)}
        s_mul_i32 {s(t3)}, {s(sT32c)}, 98304
        s_mul_i32 {s(t1)}, {s(sC16)}, 3072
        s_add_u32 {s(t3)}, {s(t3)}, {s(t1)}
        s_add_u32 {s(t3)}, {s(t3)}, {WS_H}
        s_lshl_b32 {s(t0)}, {s(sT32c)}, 7
        s_lshl_b32 {s(t1)}, {s(sC16)}, 2
        s_add_u32 {s(t0)}, {s(t0)}, {s(t1)}
        s_add_u32 {s(t0)}, {s(t0)}, {FH}
        s_add_u32 {s(t1)}, {s(sLayer)}, 1
        """)
        HP = V0 + 108
        Y2, Zz = V0 + 8, V0 + 16
        R2 = self.vRstd
        for t in range(3):
            self.wait(lt=tl[t])
            if t < 2: tabs(t + 1)
            o = 32 * (t & 1)
            for h in range(2):
                Y = ACC + 16 * t + 8 * h
                for p in range(4):
                    a(f"v_pk_fma_f32 {v(TBb+o+8*h+2*p,2)}, {v(TC+o+8*h+2*p,2)}, {v(R2,2)}, {v(TBb+o+8*h+2*p,2)} op_sel:[0,1,0] op_sel_hi:[1,1,1]")
                for p in range(4):
                    a(f"v_pk_fma_f32 {v(Y+2*p,2)}, {v(Y+2*p,2)}, {v(R2,2)}, {v(TBb+o+8*h+2*p,2)} op_sel_hi:[1,0,1]")
                for p in range(4): a(f"v_pk_mul_f32 {v(Y2+2*p,2)}, {v(Y+2*p,2)}, {v(Y+2*p,2)}")
                for p in range(4): a(f"v_pk_fma_f32 {v(Y2+2*p,2)}, {v(Y2+2*p,2)}, {s(sC1,2)}, {v(V0+4,2)}")
                for p in range(4): a(f"v_pk_mul_f32 {v(Zz+2*p,2)}, {v(Y2+2*p,2)}, {v(Y+2*p,2)}")
                for i in range(8): a(f"v_exp_f32 {v(Zz+i)}, {v(Zz+i)}")
                for p in range(4): a(f"v_pk_add_f32 {v(Zz+2*p,2)}, {v(Zz+2*p,2)}, 1.0 op_sel_hi:[1,0]")
                for i in range(8): a(f"v_rcp_f32 {v(Zz+i)}, {v(Zz+i)}")
                for p in range(4): a(f"v_pk_mul_f32 {v(Y+2*p,2)}, {v(Y+2*p,2)}, {v(Zz+2*p,2)}")
                for p in range(4): a(f"v_cvt_pk_bf16_f32 {v(HP+8*t+4*h+p)}, {v(Y+2*p)}, {v(Y+2*p+1)}")
                def em(fl, t=t, h=h):
                    a(f"buffer_store_dwordx4 {v(HP+8*t+4*h,4)}, {v(HO)}, {s(S_WS,4)}, {s(t3)} offen offset:{1024*t+512*h} {fl}")
                    if t == 2 and h == 1:
                        a("s_waitcnt vmcnt(0)")
                        self.flagstore(t0, s(t1), fl, V0, V0 + 1)
                self.dual(em)
        self.vm.reset()
        self.stamp("p4_pub")
        if self.stop == "p4": a("s_branch L_done")
        self.gemm_pre(5, N5, AB)
        a(f"""
        s_lshr_b32 {s(t0)}, {s(sT16)}, 1
        s_lshl_b32 {s(t0)}, {s(t0)}, 7
        s_add_u32 {s(t0)}, {s(t0)}, {FH}
        s_mul_i32 {s(sB)}, {s(sT16)}, 49152
        s_add_u32 {s(sB)}, {s(sB)}, {WS_H}
        """)
        self.poll(vF16, t0, s(t1), V0)
        self.stamp("p5_flag")
        self.gemm(48, 5, N5, self.MF16, RES, 4, AB, BB, 12, sB, set(self.P5BARS), True)
        self.stamp("p5_loop")
        a(f"s_cmp_lg_u32 {s(sLayer)}, 0\ns_cbranch_scc1 L_final")
        self.publish_x("2")
        a("s_setprio 0")
        self.stamp("p5_pub")
        a("s_branch L_p1b")
        a.label("L_final")
        P = V0 + 4
        A, B, C = V0, V0 + 1, V0 + 2
        a(f"""
        v_and_b32 {v(A)}, 15, {v(vLane)}
        v_mul_u32_u24 {v(A)}, 1280, {v(A)}
        v_lshrrev_b32 {v(B)}, 4, {v(vLane)}
        v_lshl_add_u32 {v(C)}, {v(B)}, 3, {v(A)}
        v_lshl_add_u32 {v(A)}, {v(B)}, 4, {v(A)}
        s_mul_i32 {s(t0)}, {s(sT16)}, {16*1280}
        s_mul_i32 {s(t1)}, {s(sC8)}, 160
        s_add_u32 {s(t0)}, {s(t0)}, {s(t1)}
        """)
        for i in range(10): a(f"v_cvt_pk_bf16_f32 {v(P+i)}, {v(RES+2*i)}, {v(RES+2*i+1)}")
        a(f"""
        buffer_store_dwordx4 {v(P,4)}, {v(A)}, {s(S_OUT,4)}, {s(t0)} offen
        buffer_store_dwordx4 {v(P+4,4)}, {v(A)}, {s(S_OUT,4)}, {s(t0)} offen offset:64
        buffer_store_dwordx2 {v(P+8,2)}, {v(C)}, {s(S_OUT,4)}, {s(t0)} offen offset:128
        """)
        if self.diag: a("s_waitcnt vmcnt(0)")
        self.stamp("p5_pub")
        a("s_branch L_done")

    def chain_helper(self):
        a = self.a
        TH = 8
        a.label("L_helper")
        self.vm.reset()
        self.dma_run(138, 159, 4, sH, TH)
        L = a.newlabel("Ltab")
        A, B, C = V0, V0 + 1, V0 + 2
        PP = V0 + 8
        a(f"""
        s_lshr_b32 {s(t0)}, {s(sH)}, 11
        s_or_b32 {s(t0)}, {s(t0)}, {s(sLayer)}
        s_cmp_lg_u32 {s(t0)}, 0
        s_cbranch_scc1 {L}
        s_lshr_b32 {s(t0)}, {s(sH)}, 4
        v_add_u32 {v(A)}, {s(t0)}, {v(vLane)}
        v_min_u32 {v(A)}, 95, {v(A)}                    ; row f
        v_and_b32 {v(B)}, 0x73, {v(A)}
        v_bfe_u32 {v(C)}, {v(A)}, 2, 1
        v_lshl_or_b32 {v(B)}, {v(C)}, 3, {v(B)}
        v_bfe_u32 {v(C)}, {v(A)}, 3, 1
        v_lshl_or_b32 {v(B)}, {v(C)}, 2, {v(B)}         ; feature
        s_mul_i32 {s(t0)}, {s(sC16)}, 192
        v_lshl_add_u32 {v(B)}, {v(B)}, 1, {s(t0)}
        global_load_ushort {v(C)}, {v(B)}, {s(P_B1,2)}
        v_lshlrev_b32 {v(A)}, 2, {v(A)}
        s_mul_i32 {s(t0)}, {s(sC16)}, 7680
        s_add_u32 {s(t0)}, {s(t0)}, {CS4P}
        s_add_u32 {s(t1)}, {s(t0)}, 3840
        """)
        for p in range(20):
            a(f"buffer_load_dword {v(PP+p)}, {v(A)}, {s(S_WS,4)}, {s(t0 if p < 10 else t1)} offen offset:{384*(p%10)} sc1")
        a(f"v_add_u32 {v(A)}, {TAB_CS4}, {v(A)}\ns_waitcnt vmcnt(0)")
        for p in range(1, 20): a(f"v_add_f32 {v(PP)}, {v(PP)}, {v(PP+p)}")
        a(f"""
        v_lshlrev_b32 {v(C)}, 16, {v(C)}
        ds_write_b32 {v(A)}, {v(PP)}
        ds_write_b32 {v(A)}, {v(C)} offset:{TAB_B1-TAB_CS4}
        """)
        a.label(L)
        a("s_waitcnt vmcnt(0) lgkmcnt(0)\ns_barrier")
        self.vm.reset()
        if self.stop == "p3": a("s_branch L_done")
        tk = self.dma_run(159, 259, 4, sH, TH)
        self.wait(vt=tk[219])
        a("s_barrier")
        self.vm.waitall()
        a("s_barrier")
        if self.stop == "p4": a("s_branch L_done")
        self.vm.reset()
        tk = self.dma_run(259, 379, 4, sH, TH)
        nxt = 379
        bars = self.P5BARS
        for i, k in enumerate(bars):
            kn = bars[i + 1] if i + 1 < len(bars) else 48
            need = N5 + 5 * min(kn + 2, 48) - 1
            assert need < nxt, (k, need, nxt)
            if need in tk: self.wait(vt=tk[need])
            if nxt >= N1 and i == len(bars) - 1: pass
            a("s_barrier")
            lim = N5 + 5 * (k + 1) + NSLOT
            if nxt < N1:
                e = min(lim, N1)
                tk.update(self.dma_run(nxt, e, 4, sH, TH)); nxt = e
        assert nxt == N1 and N5 + 5 * (bars[-1] + 1) + NSLOT >= N1 + 80
        a(f"s_cmp_lg_u32 {s(sLayer)}, 0\ns_cbranch_scc1 L_done")
        self.dma_run(N1, N1 + 80, 4, sH, TH)
        self.vm.waitall()
        a("s_barrier")
        a("s_branch L_p1b")

    def p1b(self):
        a = self.a
        AB, BB = V0 + 40, V0 + 100
        ST = V0 + 68
        sB = sSoB
        a.label("L_p1b")
        if self.stop == "p5": a("s_branch L_done")
        a(f"s_mov_b32 {s(sLayer)}, 1\ns_add_u32 {s(sKV)}, {s(sKV)}, {32*KVH}")
        self.gemm_pre(2, N1, AB)
        a(f"""
        s_lshl_b32 {s(t0)}, {s(sT32)}, 7
        s_add_u32 {s(t0)}, {s(t0)}, {FX}
        s_mul_i32 {s(sB)}, {s(sT32)}, 40960
        s_add_u32 {s(sB)}, {s(sB)}, {WS_X}
        """)
        self.poll(vF16, t0, "2", V0)
        self.stamp("p1b_flag")
        tks = {}
        def ld(): tks["s"] = self.loadstats(sT32, ST)
        def us():
            self.wait(vt=tks["s"]); self.usestats(ST)
        self.gemm(40, 2, N1, self.MF32, self.ACC, 16, AB, BB, 8, sB, set(), True, extra={-1: ld, 10: us}, zero_first=True)
        self.stamp("p1a_loop")
        a("s_branch L_epi1")

    def build(self):
        a = self.a
        self.init()
        self.p1a()
        self.epi1()
        self.stamp("epi1")
        self.attention()
        if self.stop == "att": a("s_branch L_done")
        a(f"s_cmp_ge_u32 {s(sW)}, 4\ns_cbranch_scc1 L_helper")
        self.chain_compute()
        self.chain_helper()
        self.p1b()
        self.slowpath()
        a.label("L_done")
        if self.diag:
            a(f"""
            s_lshl_b32 {s(t0)}, s2, 3
            s_add_u32 {s(t0)}, {s(t0)}, {s(sW)}
            s_lshl_b32 {s(t0)}, {s(t0)}, 8
            s_add_u32 {s(t0)}, {s(t0)}, {WS_END}
            s_memrealtime {s(sStampT,2)}
            s_waitcnt lgkmcnt(0)
            v_writelane_b32 {v(vDiag)}, {s(sStampT)}, 31
            v_writelane_b32 {v(vDiag)}, {s(sFast)}, 30
            v_writelane_b32 {v(vDiag)}, {s(sSpin)}, 62
            v_lshlrev_b32 {v(vT)}, 2, {v(vLane)}
            v_add_u32 {v(vT)}, {s(t0)}, {v(vT)}
            global_store_dword {v(vT)}, {v(vDiag)}, {s(P_WS,2)}
            """)
        a.label("L_exit")
        a("s_endpgm")
        a.label("L_codeend")
        return a

HEADER = """; Persistent two-layer attention + MLP block, one workgroup per CU (generated by my gen.py).
; @launch grid=(256,1,1) block=(512,1,1) lds=163840
.amdgcn_target "amdgcn-amd-amdhsa--gfx950"
.text
.globl {k}
.p2align 8
.type {k},@function
{k}:
"""
FOOTER = """.section .rodata,"a"
.p2align 6
.amdhsa_kernel {k}
  .amdhsa_next_free_vgpr 256
  .amdhsa_next_free_sgpr 96
  .amdhsa_accum_offset 256
  .amdhsa_group_segment_fixed_size 0
  .amdhsa_kernarg_size 88
  .amdhsa_user_sgpr_count 2
  .amdhsa_user_sgpr_kernarg_segment_ptr 1
  .amdhsa_system_sgpr_workgroup_id_x 1
  .amdhsa_float_denorm_mode_32 3
.end_amdhsa_kernel
"""

def generate(**kw):
    g = Gen(**kw)
    a = g.build()
    pr = lint(a.lines)
    for p in pr: print("LINT:", p, file=sys.stderr)
    return HEADER.format(k=KNAME) + a.text() + FOOTER.format(k=KNAME), g

if __name__ == "__main__":
    import argparse
    ap = argparse.ArgumentParser()
    ap.add_argument("-o", default="interleave_layers__softmax_full_mha__dense_activation_gelu__prompt.s")
    ap.add_argument("--diag", action="store_true")
    ap.add_argument("--stop")
    ap.add_argument("--safe", action="store_true")
    ap.add_argument("--slow", action="store_true")
    x = ap.parse_args()
    txt, g = generate(diag=x.diag, stop=x.stop, force_safe=x.safe, force_slow=x.slow)
    open(x.o, "w").write(txt)
    print("wrote", x.o, len(txt), "bytes", len(g.a.lines), "lines")
```

```python
import sys, math, struct
from asmlib import *

KNAME = "interleave_layers__softmax_full_mha__dense_activation_gelu__prompt_kernel"

FO, FX, FH, FRP, FKV = 0, 8192, 16384, 24576, 32768
STATS = 0x10000
CS4P = STATS + 0x20000
DIAG = CS4P + 0x20000
WS_X = DIAG + 0x40000
WS_H = WS_X + 2621440
WS_O = WS_H
OST = 49152
W3P = WS_H + 6291456
W4P = W3P + 819200
W5P = W4P + 1966080
WS_KV = W5P + 1966080
TB = 2624
KVB = 8 * TB
KVH = 8 * KVB
WS_END = WS_KV + 2 * 32 * KVH

NSLOT = 159
RING0 = 63
STEP = 2 * TB
W1SLOT = 64
NREG0 = 132
TAB = 159 * 1024
TAB_CS1, TAB_CS4, TAB_B1 = TAB, TAB + 256, TAB + 640
WIMG = 65536
XS = 0
CSP = WIMG + 92416
RPK = 3 * KVB
def kvslot(b): return ((b + 1) % 3) * KVB
N3, N4, N5, N1 = 0, 100, 220, 460
def slot(n): return (RING0 + n) % NSLOT if n < N1 else W1SLOT + n - N1

S_WS, S_X, S_WQ, S_OUT, S_RAW = 4, 8, 12, 16, 20
sX, sJ, sW, sLayer, sFast, sSpin, sXcc = 24, 25, 26, 27, 28, 29, 30
sT16, sT32c, sC8, sC16 = 31, 32, 33, 34
sT32 = 35
sH = 36
sW1k = 37
sKV = 38
sOnes = 39
sUnit = 40
t0, t1, t2, t3, t4, t5, t6, t7 = 44, 45, 46, 47, 48, 49, 50, 51
sEx = 52
sC0, sC1 = 54, 56
sP = 58
sSoA, sSoB, sM0A, sM0B = 59, 60, 61, 62
sRdy = 63
sDone = 3
KA = 64
P_X, P_WQ, P_WO, P_W1, P_B1, P_W2, P_B2, P_OUT, P_DBG, P_WS = 64, 66, 68, 72, 74, 76, 78, 80, 82, 84
sStampT = 86
sWTB, sKVs, sFKV, sMix = 90, 91, 92, 93

vLane, vL16, vL16b, vL16c = 1, 2, 3, 4
vHH, vDiag = 5, 6
vT = 7
RES = 8
SEL1 = 28
SEL2 = 32
vOnesM = 34
vIdx = 35
vAKw = 36
vATw = 37
vAVw = 38
vAKt = 39
vAVr = 40
vOm = 41
vOt = 42
vXm = 43
vXt = 44
vSt = 45
vF32 = 46
vF16 = 47
V0 = 48

def f2u(x): return struct.unpack("<I", struct.pack("<f", x))[0]
def hexf(x): return "0x%08x" % f2u(x)

class Gen:
    def __init__(self, diag=False, stop=None, force_safe=False, force_slow=False, opt=None):
        self.a = Asm()
        self.opt = opt or {}
        self.diag, self.stop = diag, stop
        self.force_safe, self.force_slow = force_safe, force_slow
        self.vm = Ctr(self.a, "vmcnt", 63)
        self.lg = Ctr(self.a, "lgkmcnt", 15)
        self.nstamp = 0
        self.ool = []
        self.ool0 = []
        self.stampnames = []

    def stamp(self, name):
        if not self.diag: return
        a = self.a
        if name in self.stampnames: idx = self.stampnames.index(name)
        else:
            idx = len(self.stampnames); self.stampnames.append(name)
        assert idx < 29
        a(f"s_memtime {s(sStampT,2)}")
        a(f"s_memrealtime {s(sStampT+2,2)}")
        a("s_waitcnt lgkmcnt(0)")
        a(f"s_lshl_b32 {s(sStampT+1)}, {s(sLayer)}, 5")
        a(f"s_add_u32 m0, {s(sStampT+1)}, {idx}")
        a("s_nop 0")
        a(f"v_writelane_b32 {v(vDiag)}, {s(sStampT)}, m0")
        a(f"v_writelane_b32 v0, {s(sStampT+2)}, m0")
        self.lg.done = self.lg.issued

    def wait(self, vt=None, lt=None):
        parts = []
        for c, t in ((self.vm, vt), (self.lg, lt)):
            if t is None or t <= c.done: continue
            n = min(c.issued - t, c.maxv)
            parts.append(f"{c.name}({n})"); c.done = c.issued - n
        if parts: self.a("s_waitcnt " + " ".join(parts))

    def ldsaddr(self, byte):
        return [vL16, vL16b, vL16c][byte >> 16], byte & 0xffff

    def poll(self, vaddr, soff, val, tmp):
        a = self.a
        L, D = a.newlabel("Lpoll"), a.newlabel("Lpolld")
        a.label(L)
        a(f"buffer_load_dword {v(tmp)}, {v(vaddr)}, {s(S_WS,4)}, {s(soff)} offen sc1")
        a("s_waitcnt vmcnt(0)")
        a(f"v_cmp_gt_u32 vcc, {val}, {v(tmp)}")
        a(f"s_cbranch_vccz {D}")
        a(f"s_sub_u32 {s(sSpin)}, {s(sSpin)}, 1")
        a(f"s_cbranch_scc0 {L}")
        a(f"s_mov_b32 {s(sSpin)}, 0")
        a.label(D)
        self.vm.reset()

    def dual(self, emit):
        a = self.a
        S, E = a.newlabel("Lsafe"), a.newlabel("Lsend")
        a(f"s_cmp_eq_u32 {s(sFast)}, 0")
        a(f"s_cbranch_scc1 {S}")
        st = (self.vm.issued, self.vm.done, self.lg.issued, self.lg.done)
        emit("")
        a.label(E)
        main = a.lines
        a.lines = self.ool
        a.label(S)
        self.vm.issued, self.vm.done, self.lg.issued, self.lg.done = st
        emit("sc1")
        a(f"s_branch {E}")
        a.lines = main

    def flagstore(self, soff, val, fl, va, vb):
        a = self.a
        a(f"v_mov_b32 {v(va)}, 0")
        a(f"v_mov_b32 {v(vb)}, {val}")
        a(f"s_mov_b64 exec, 1")
        a(f"buffer_store_dword {v(vb)}, {v(va)}, {s(S_WS,4)}, {s(soff)} offen {fl}")
        a(f"s_mov_b64 exec, -1")
        self.vm.issue()

    def wsrc(self, n):
        if n < N4: return 0, (n - N3) * 1024
        if n < N5: return 1, (n - N4) * 1024
        if n < N1: return 2, (n - N5) * 1024
        return 3, (n - N1) * 1024

    def dma_run(self, n0, n1, nw, sWave, throttle=None, flags=''):
        a = self.a
        tick = {}
        n = n0
        while n < n1:
            ph, _ = self.wsrc(n)
            e = min(n1, [N4, N5, N1][ph], n + (NSLOT - slot(n)))
            base = self.wbase[ph]
            k = n
            while k < e:
                cnt = min(nw, e - k)
                wv = sWave
                if cnt < nw:
                    a(f"s_min_u32 {s(t7)}, {s(sWave)}, {(cnt-1)*1024}")
                    wv = t7
                a(f"s_add_u32 m0, {s(wv)}, {slot(k)*1024}")
                a(f"s_add_u32 {s(t6)}, {s(wv)}, {s(base)}")
                off = self.wsrc(k)[1]
                a(f"s_add_u32 {s(t6)}, {s(t6)}, {off}")
                a(f"buffer_load_dwordx4 {v(vL16)}, {s(S_WS,4)}, {s(t6)} offen sc1 {flags} lds")
                tk = self.vm.issue()
                for q in range(k, k + cnt): tick[q] = tk
                if throttle is not None and self.vm.issued - self.vm.done > throttle:
                    self.wait(vt=self.vm.issued - throttle)
                k += cnt
            n = e
        return tick

    def init(self):
        a = self.a
        a(f"""
        s_cmp_ge_u32 s2, 256
        s_cbranch_scc1 L_exit
        s_load_dwordx16 {s(KA,16)}, s[0:1], 0
        s_load_dwordx4 {s(KA+16,4)}, s[0:1], 64
        s_load_dwordx2 {s(KA+20,2)}, s[0:1], 80
        v_lshrrev_b32 {v(vT)}, 6, v0
        v_and_b32 {v(vLane)}, 63, v0
        v_readfirstlane_b32 {s(sW)}, {v(vT)}
        s_and_b32 {s(sX)}, s2, 7
        s_lshr_b32 {s(sJ)}, s2, 3
        s_getreg_b32 {s(sXcc)}, hwreg(HW_REG_XCC_ID)
        s_and_b32 {s(sXcc)}, {s(sXcc)}, 7
        s_mov_b32 {s(sLayer)}, 0
        s_mov_b32 {s(sFast)}, 0
        s_mov_b32 {s(sSpin)}, 400000
        s_mov_b32 {s(sOnes)}, 0x3f803f80
        v_lshlrev_b32 {v(vL16)}, 4, {v(vLane)}
        v_lshrrev_b32 {v(vHH)}, 5, {v(vLane)}
        v_mov_b32 {v(vDiag)}, 0
        s_lshl_b32 {s(sW1k)}, {s(sW)}, 10
        s_and_b32 {s(sH)}, {s(sW1k)}, 3072
        s_lshl_b32 {s(sT32)}, {s(sX)}, 3
        s_add_u32 {s(sT32)}, {s(sT32)}, {s(sW)}
        """)
        self.stamp("start")
        if self.diag:
            a(f"s_memrealtime {s(sStampT,2)}\ns_waitcnt lgkmcnt(0)\nv_writelane_b32 {v(vDiag)}, {s(sStampT)}, 63")
        self.vWd = 208; self.vXe = 209; self.vXo = 210
        self.vXr = 212
        self.vWr = 216
        A, B, C = V0, V0 + 1, V0 + 2
        a(f"""
        v_mul_u32_u24 {v(A)}, 57, {v(vLane)}
        v_lshrrev_b32 {v(A)}, 9, {v(A)}                 ; row = l/9
        v_mul_u32_u24 {v(B)}, 9, {v(A)}
        v_sub_u32 {v(B)}, {v(vLane)}, {v(B)}            ; q
        v_mul_u32_u24 {v(C)}, 11, {v(B)}
        v_lshrrev_b32 {v(C)}, 5, {v(C)}                 ; seg
        v_mul_u32_u24 {v(A)}, 3840, {v(A)}
        v_lshl_add_u32 {v(A)}, {v(B)}, 4, {v(A)}        ; + q*16
        v_mul_u32_u24 {v(C)}, {1280-48}, {v(C)}
        v_add_u32 {v(self.vWd)}, {v(A)}, {v(C)}
        v_lshrrev_b32 {v(A)}, 3, {v(vLane)}             ; r
        v_lshrrev_b32 {v(B)}, 4, {v(vLane)}             ; r>>1
        v_and_b32 {v(C)}, 7, {v(vLane)}
        v_xor_b32 {v(B)}, {v(B)}, {v(C)}
        v_mul_u32_u24 {v(A)}, 1280, {v(A)}
        v_lshl_add_u32 {v(self.vXe)}, {v(B)}, 4, {v(A)}
        v_xor_b32 {v(self.vXo)}, 64, {v(self.vXe)}
        """)
        a(f"""
        s_mul_i32 {s(t0)}, {s(sJ)}, 40
        s_and_b32 {s(t0)}, {s(t0)}, 0xfffffff0
        s_mul_i32 {s(sSoA)}, {s(sW)}, {7*3840}
        s_add_u32 {s(sSoA)}, {s(sSoA)}, {s(t0)}          ; W soffset
        s_mul_i32 {s(sM0A)}, {s(sW)}, 1008
        s_add_u32 {s(sM0A)}, {s(sM0A)}, {WIMG}           ; W lds
        s_mul_i32 {s(sSoB)}, {s(sT32)}, {32*1280}        ; x soffset
        s_lshl_b32 {s(sM0B)}, {s(sW)}, 13                ; x lds
        s_waitcnt lgkmcnt(0)
        s_mov_b32 {s(S_X)}, {s(P_X)}
        s_mov_b32 {s(S_X+1)}, {s(P_X+1)}
        s_mov_b32 {s(S_X+2)}, 2621440
        s_mov_b32 {s(S_X+3)}, 0x20000
        s_mov_b32 {s(S_WQ)}, {s(P_WQ)}
        s_mov_b32 {s(S_WQ+1)}, {s(P_WQ+1)}
        s_mov_b32 {s(S_WQ+2)}, 2457600
        s_mov_b32 {s(S_WQ+3)}, 0x20000
        s_mov_b32 {s(S_WS)}, {s(P_WS)}
        s_mov_b32 {s(S_WS+1)}, {s(P_WS+1)}
        s_mov_b32 {s(S_WS+2)}, {WS_END}
        s_mov_b32 {s(S_WS+3)}, 0x20000
        """)
        a(f"""
        s_lshl_b32 {s(t0)}, {s(sJ)}, 3
        s_add_u32 {s(t0)}, {s(t0)}, {s(sW)}
        s_lshl_b32 {s(t1)}, {s(sX)}, 8
        s_add_u32 {s(t0)}, {s(t0)}, {s(t1)}
        s_mul_i32 {s(t0)}, {s(t0)}, 1280
        v_lshlrev_b32 {v(A)}, 7, {v(vLane)}
        s_mov_b64 exec, 0x3ff
        buffer_load_dword v220, {v(A)}, {s(S_X,4)}, {s(t0)} offen
        """)
        if not self.opt.get("nowpf"):
            a(f"buffer_load_dword v221, {v(A)}, {s(S_WQ,4)}, {s(t0)} offen")
        a("s_mov_b64 exec, -1")
        L = a.newlabel("Lnopf")
        a(f"""
        s_cmp_lg_u32 {s(sW)}, 7
        s_cbranch_scc1 {L}
        s_getpc_b64 {s(t2,2)}
        L_pc:
        s_lshl_b32 {s(t0)}, {s(sJ)}, 11
        v_add_u32 {v(A)}, {s(t0)}, {v(A)}
        v_min_u32 {v(A)}, (L_codeend-L_pc-4), {v(A)}
        s_mov_b64 exec, 0xffff
        global_load_dword v222, {v(A)}, {s(t2,2)}
        s_mov_b64 exec, -1
        """)
        a.label(L)
        L = a.newlabel("Lnoclr")
        a(f"""
        s_cmp_lg_u32 {s(sJ)}, 0
        s_cbranch_scc1 {L}
        v_mov_b32 {v(V0+4)}, 0
        v_mov_b32 {v(V0+5)}, 0
        v_mov_b32 {v(V0+6)}, 0
        v_mov_b32 {v(V0+7)}, 0
        s_lshl_b32 {s(t0)}, {s(sT32)}, 10
        buffer_store_dwordx4 {v(V0+4,4)}, {v(vL16)}, {s(S_WS,4)}, {s(t0)} offen sc1
        """)
        a.label(L)
        self.wtk, self.xtk = [], {}
        self.wround(); self.wround()
        for i in range(4): self.xdma(0, i)
        a(f"""
        s_mov_b32 {s(S_OUT)}, {s(P_OUT)}
        s_mov_b32 {s(S_OUT+1)}, {s(P_OUT+1)}
        s_mov_b32 {s(S_OUT+2)}, 2621440
        s_mov_b32 {s(S_OUT+3)}, 0x20000
        s_and_b32 {s(sC8)}, {s(sJ)}, 7
        s_and_b32 {s(sC16)}, {s(sJ)}, 15
        s_and_b32 {s(t0)}, {s(sW)}, 3
        s_lshr_b32 {s(t1)}, {s(sJ)}, 3
        s_lshl_b32 {s(t1)}, {s(t1)}, 2
        s_lshl_b32 {s(sT16)}, {s(sX)}, 4
        s_add_u32 {s(sT16)}, {s(sT16)}, {s(t1)}
        s_add_u32 {s(sT16)}, {s(sT16)}, {s(t0)}
        s_lshr_b32 {s(t1)}, {s(sJ)}, 4
        s_lshl_b32 {s(t1)}, {s(t1)}, 2
        s_lshl_b32 {s(sT32c)}, {s(sX)}, 3
        s_add_u32 {s(sT32c)}, {s(sT32c)}, {s(t1)}
        s_add_u32 {s(sT32c)}, {s(sT32c)}, {s(t0)}
        s_mul_i32 {s(sKV)}, {s(sJ)}, {KVH}
        s_add_u32 {s(sKV)}, {s(sKV)}, {WS_KV}
        v_add_u32 {v(vL16b)}, 0x10000, {v(vL16)}
        v_add_u32 {v(vL16c)}, 0x20000, {v(vL16)}
        v_mov_b32 {v(vIdx)}, 0xdddddddd
        s_mul_i32 {s(sWTB)}, {s(sW)}, {TB}
        s_lshl_b32 {s(sFKV)}, {s(sJ)}, 10
        s_add_u32 {s(sFKV)}, {s(sFKV)}, {FKV}
        """)
        self.wbase = [41, 42, 43]
        a(f"""
        s_mul_i32 s41, {s(sC8)}, 102400
        s_add_u32 s41, s41, {W3P}
        s_mul_i32 s42, {s(sC16)}, 122880
        s_add_u32 s42, s42, {W4P}
        s_mul_i32 s43, {s(sC8)}, 245760
        s_add_u32 s43, s43, {W5P}
        """)
        c0 = -2.0 * math.log2(math.e) * math.sqrt(2.0 / math.pi)
        a(f"""
        s_mov_b32 {s(sC0)}, {hexf(c0)}
        s_mov_b32 {s(sC0+1)}, {hexf(c0)}
        s_mov_b32 {s(sC1)}, {hexf(c0*0.044715)}
        s_mov_b32 {s(sC1+1)}, {hexf(c0*0.044715)}
        """)
        N, Dd, E, Fq = V0 + 8, V0 + 9, V0 + 10, V0 + 11
        a(f"""
        v_and_b32 {v(N)}, 31, {v(vLane)}                ; n / tau
        v_lshlrev_b32 {v(vF32)}, 2, {v(N)}
        v_and_b32 {v(vF16)}, 60, {v(vF32)}
        v_bfe_u32 {v(Dd)}, {v(vLane)}, 1, 3
        v_xor_b32 {v(Dd)}, {v(Dd)}, {v(vHH)}
        v_lshlrev_b32 {v(Dd)}, 4, {v(Dd)}
        v_lshl_add_u32 {v(Dd)}, {v(N)}, 7, {v(Dd)}
        s_lshl_b32 {s(t0)}, {s(sW)}, 13
        v_add_u32 {v(self.vXr)}, {s(t0)}, {v(Dd)}
        """)
        for i in range(1, 4):
            a(f"v_xor_b32 {v(self.vXr+i)}, {32*i}, {v(self.vXr)}")
        tb = [[6, 8, 7, 9, 12, 14, 13, 15], [10, 16, 4, 4, 0, 2, 1, 3]]
        a(f"""
        v_bfe_u32 {v(Dd)}, {v(vLane)}, 2, 2             ; r
        v_lshl_add_u32 {v(Dd)}, {v(vHH)}, 3, {v(Dd)}    ; 8g + r
        v_mul_u32_u24 {v(Dd)}, 144, {v(Dd)}
        s_and_b32 {s(t0)}, {s(sJ)}, 1
        s_lshl_b32 {s(t0)}, {s(t0)}, 3
        s_add_u32 {s(t0)}, {s(t0)}, {WIMG}
        v_add_u32 {v(Dd)}, {s(t0)}, {v(Dd)}
        v_and_b32 {v(E)}, 3, {v(vLane)}
        v_lshlrev_b32 {v(E)}, 3, {v(E)}                 ; 8*c
        v_and_b32 {v(Fq)}, 16, {v(vLane)}
        v_cmp_ne_u32 vcc, 0, {v(Fq)}
        """)
        for t in range(2):
            lo = sum((tb[t][i] * 8) << (8 * i) for i in range(4))
            hi = sum((tb[t][4 + i] * 8) << (8 * i) for i in range(4))
            a(f"""
            v_mov_b32 {v(Fq)}, {hex(lo)}
            v_mov_b32 {v(Fq+1)}, {hex(hi)}
            v_cndmask_b32 {v(Fq)}, {v(Fq)}, {v(Fq+1)}, vcc
            v_bfe_u32 {v(Fq)}, {v(Fq)}, {v(E)}, 8
            v_add_u32 {v(self.vWr+t)}, {v(Dd)}, {v(Fq)}
            """)
        a(f"""
        v_and_b32 {v(Dd)}, 1, {v(vLane)}
        v_lshlrev_b32 {v(Dd)}, 4, {v(Dd)}
        v_mov_b32 {v(E)}, 0x3f80
        v_lshlrev_b32 {v(Dd)}, {v(Dd)}, {v(E)}
        v_bfe_u32 {v(E)}, {v(vLane)}, 2, 1
        v_xor_b32 {v(E)}, {v(E)}, {v(vHH)}              ; 0 when ((n>>2)&1)==g
        v_lshlrev_b32 {v(E)}, 4, {v(E)}
        v_lshrrev_b32 {v(Fq)}, 3, {v(N)}
        v_lshl_or_b32 {v(E)}, {v(Fq)}, 1, {v(E)}
        v_bfe_u32 {v(Fq)}, {v(vLane)}, 1, 1
        v_or_b32 {v(E)}, {v(E)}, {v(Fq)}                ; key
        """)
        for r in range(4):
            a(f"v_cmp_eq_u32 vcc, {r}, {v(E)}\ns_nop 1\nv_cndmask_b32 {v(SEL1+r)}, 0, {v(Dd)}, vcc")
        a(f"v_lshrrev_b32 {v(E)}, 1, {v(vLane)}")
        for r in range(2):
            a(f"v_cmp_eq_u32 vcc, {24+r}, {v(E)}\ns_nop 1\nv_cndmask_b32 {v(SEL2+r)}, 0, {v(Dd)}, vcc")
        a(f"""
        v_mov_b32 {v(E)}, {s(sOnes)}
        v_cmp_eq_u32 vcc, 20, {v(N)}
        s_nop 1
        v_cndmask_b32 {v(vOnesM)}, 0, {v(E)}, vcc
        v_and_b32 {v(Dd)}, 0x13, {v(N)}
        v_bfe_u32 {v(E)}, {v(N)}, 2, 1
        v_lshl_or_b32 {v(Dd)}, {v(E)}, 3, {v(Dd)}
        v_bfe_u32 {v(E)}, {v(N)}, 3, 1
        v_lshl_or_b32 {v(Dd)}, {v(E)}, 2, {v(Dd)}
        s_mul_i32 {s(t0)}, {s(sW)}, {TB}
        v_lshlrev_b32 {v(E)}, 9, {v(vHH)}
        v_lshl_add_u32 {v(E)}, {v(Dd)}, 4, {v(E)}
        v_add_u32 {v(vAKw)}, {s(t0)}, {v(E)}
        v_lshlrev_b32 {v(E)}, 3, {v(Dd)}
        v_add_u32 {v(vATw)}, {s(t0)}, {v(E)}
        v_min_u32 {v(Dd)}, 20, {v(N)}
        v_mul_u32_u24 {v(E)}, 336, {v(vHH)}
        v_lshl_add_u32 {v(vAVr)}, {v(Dd)}, 4, {v(E)}
        v_add_u32 {v(vAVw)}, {s(t0)}, {v(vAVr)}
        v_mul_u32_u24 {v(E)}, {TB}, {v(vHH)}
        v_lshl_add_u32 {v(vAKt)}, {v(N)}, 3, {v(E)}
        ; o offsets
        v_lshrrev_b32 {v(Dd)}, 4, {v(N)}
        v_mul_u32_u24 {v(Dd)}, {OST}, {v(Dd)}
        v_lshl_add_u32 {v(Dd)}, {v(vF16)}, 2, {v(Dd)}
        s_mul_i32 {s(t0)}, {s(sT32)}, {2*OST}
        s_add_u32 {s(t0)}, {s(t0)}, {WS_O}
        s_lshl_b32 {s(t1)}, {s(sJ)}, 9
        s_add_u32 {s(t1)}, {s(t1)}, {s(t0)}
        v_lshl_add_u32 {v(E)}, {v(vHH)}, 8, {v(Dd)}
        v_add_u32 {v(vOm)}, {s(t1)}, {v(E)}
        s_lshr_b32 {s(t1)}, {s(sJ)}, 1
        s_lshl_b32 {s(t1)}, {s(t1)}, 8
        s_and_b32 {s(t2)}, {s(sJ)}, 1
        s_lshl_b32 {s(t2)}, {s(t2)}, 3
        s_add_u32 {s(t1)}, {s(t1)}, {s(t2)}
        s_add_u32 {s(t1)}, {s(t1)}, {s(t0)}
        s_add_u32 {s(t1)}, {s(t1)}, 16384
        v_add_u32 {v(vOt)}, {s(t1)}, {v(Dd)}
        s_lshr_b32 {s(t0)}, {s(sT16)}, 1
        s_and_b32 {s(t1)}, {s(sT16)}, 1
        s_mul_i32 {s(t2)}, {s(t0)}, 40960
        s_mul_i32 {s(t3)}, {s(sC8)}, 5120
        s_add_u32 {s(t2)}, {s(t2)}, {s(t3)}
        s_lshl_b32 {s(t3)}, {s(t1)}, 8
        s_add_u32 {s(t2)}, {s(t2)}, {s(t3)}
        s_add_u32 {s(t2)}, {s(t2)}, {WS_X}
        v_lshrrev_b32 {v(Dd)}, 4, {v(vLane)}            ; q
        v_lshlrev_b32 {v(E)}, 9, {v(Dd)}
        v_lshl_add_u32 {v(E)}, {v(vF16)}, 2, {v(E)}
        v_add_u32 {v(vXm)}, {s(t2)}, {v(E)}
        v_lshlrev_b32 {v(E)}, 9, {v(vHH)}
        v_lshl_add_u32 {v(E)}, {v(vF16)}, 2, {v(E)}
        v_and_b32 {v(Fq)}, 1, {v(Dd)}
        v_lshl_add_u32 {v(E)}, {v(Fq)}, 3, {v(E)}
        s_add_u32 {s(t2)}, {s(t2)}, 4096
        v_add_u32 {v(vXt)}, {s(t2)}, {v(E)}
        s_lshl_b32 {s(t2)}, {s(t0)}, 11
        s_lshl_b32 {s(t3)}, {s(t1)}, 8
        s_add_u32 {s(t2)}, {s(t2)}, {s(t3)}
        s_lshr_b32 {s(t3)}, {s(sC8)}, 1
        s_lshl_b32 {s(t3)}, {s(t3)}, 9
        s_add_u32 {s(t2)}, {s(t2)}, {s(t3)}
        s_and_b32 {s(t3)}, {s(sC8)}, 1
        s_lshl_b32 {s(t3)}, {s(t3)}, 3
        s_add_u32 {s(t2)}, {s(t2)}, {s(t3)}
        s_add_u32 {s(t2)}, {s(t2)}, {STATS}
        v_lshlrev_b32 {v(E)}, 2, {v(vF16)}
        v_lshl_add_u32 {v(E)}, {v(vHH)}, 2, {v(E)}
        v_add_u32 {v(vSt)}, {s(t2)}, {v(E)}
        """)

    def wround(self):
        a = self.a
        a(f"s_mov_b32 m0, {s(sM0A)}")
        a(f"s_add_u32 {s(sM0A)}, {s(sM0A)}, 8064")
        a(f"buffer_load_dwordx4 {v(self.vWd)}, {s(S_WQ,4)}, {s(sSoA)} offen lds")
        a(f"s_add_u32 {s(sSoA)}, {s(sSoA)}, 215040")
        self.wtk.append(self.vm.issue())

    def xdma(self, p, i):
        a = self.a
        a(f"s_add_u32 m0, {s(sM0B)}, {(p&1)*4096 + i*1024}")
        a(f"s_add_u32 {s(t7)}, {s(sSoB)}, {i*10240 + p*128}")
        a(f"buffer_load_dwordx4 {v(self.vXo if i & 1 else self.vXe)}, {s(S_X,4)}, {s(t7)} offen lds")
        self.xtk[p] = self.vm.issue()

    ACC = 224
    vRstd, vNm = 132, 133
    vS, vQ = 134, 135

    def p1a(self):
        a = self.a
        ACC = self.ACC
        XF = [144, 160]
        WF = 176
        cs = 136
        vK = self.vWr + 2
        for r in (self.vS, self.vQ, cs, cs + 1): a(f"v_mov_b32 {v(r)}, 0")
        a(f"s_mul_i32 {s(t0)}, {s(sW)}, {16*144}")
        for t in range(2): a(f"v_add_u32 {v(vK+t)}, {s(t0)}, {v(self.vWr+t)}")
        xl, wl, kl = {}, {}, {}
        wbase = [0]
        def xreads(p):
            for i in range(4):
                a(f"ds_read_b128 {v(XF[p&1]+4*i,4)}, {v(self.vXr+i)} offset:{4096*(p&1)}"); xl[p] = self.lg.issue()
        def trreads(dst, ar, k):
            for t in range(2):
                for ab in range(2):
                    a(f"ds_read_b64_tr_b16 {v(dst+4*t+2*ab,2)}, {v(ar+t)} offset:{(16*(k-wbase[0])+4*ab)*144}")
                    tk = self.lg.issue()
            return tk
        def wneed(p): return -(-64 * (p + 1) // 56) - 1
        for i in range(4): self.xdma(1, i)
        self.wround()
        self.lg.reset()
        self.wait(vt=max(self.xtk[0], self.wtk[wneed(0)]))
        a("s_barrier")
        xreads(0)
        for k in range(2): wl[k] = trreads(WF + 8 * k, self.vWr, k)
        L = a.newlabel("Larr")
        a(f"""
        s_or_b32 {s(t0)}, {s(sJ)}, {s(sW)}
        s_cmp_lg_u32 {s(t0)}, 0
        s_cbranch_scc1 {L}
        s_lshl_b32 {s(t0)}, {s(sX)}, 2
        v_mov_b32 v138, {s(t0)}
        v_mov_b32 v139, 1
        s_mov_b64 exec, 1
        global_store_dword v138, v139, {s(P_DBG,2)} offset:64 sc1
        s_mov_b64 exec, -1
        """)
        a.label(L)
        self.stamp("p1a_first")
        for k in range(40):
            p, i = k >> 2, k & 3
            if k == 24:
                for r in range(4): a(f"v_add_u32 {v(self.vWr+r)}, {16*24*144}, {v(self.vWr+r)}")
                wbase[0] = 24
            if i == 2 and p < 9:
                self.wait(vt=max(self.xtk[p + 1], self.wtk[wneed(p + 1)]), lt=wl[k])
                if p == 8:
                    L = a.newlabel("Lri")
                    a(f"s_cmp_ge_u32 {s(sW)}, 4\ns_cbranch_scc1 {L}")
                    self.repack_issue()
                    a.label(L)
                a("s_barrier")
            else:
                self.wait(lt=max(wl[k], xl[p]))
            for t in range(2):
                c = v(ACC + 16 * t, 16) if k else "0"
                a(f"v_mfma_f32_32x32x16_bf16 {v(ACC+16*t,16)}, {v(WF+8*i+4*t,4)}, {v(XF[p&1]+4*i,4)}, {c}")
            if i == 2 and p < 9: xreads(p + 1)
            if k + 2 < 40: wl[k + 2] = trreads(WF + 8 * ((k + 2) & 3), self.vWr, k + 2)
            if k & 7 == 4: kl[k >> 3] = trreads(self.KEEP + 8 * (k >> 3), vK, k & ~7)
            if p < 8:
                if i == 0: self.xdma(p + 2, 0); self.xdma(p + 2, 1)
                elif i < 3: self.xdma(p + 2, i + 1)
                else:
                    while len(self.wtk) <= wneed(p + 2): self.wround()
            if i == self.opt.get("dotpos", 1):
                for r in range(0 if self.opt.get("nodot") else 16):
                    a(f"v_dot2c_f32_bf16 {v(self.vS)}, {s(sOnes)}, {v(XF[p&1]+r)}")
                    a(f"v_dot2c_f32_bf16 {v(self.vQ)}, {v(XF[p&1]+r)}, {v(XF[p&1]+r)}")
            if k & 7 == 7:
                self.wait(lt=kl[k >> 3])
                for r in range(4):
                    for t in range(2):
                        a(f"v_dot2c_f32_bf16 {v(cs+t)}, {s(sOnes)}, {v(self.KEEP+8*(k>>3)+4*t+r)}")
        assert len(self.wtk) == 12
        self.vm.reset(); self.lg.reset()
        self.stamp("p1a_loop")
        A = 144
        a(f"""
        s_nop 2
        v_permlane32_swap_b32 {v(cs)}, {v(cs+1)}
        s_lshl_b32 {s(t0)}, {s(sW)}, 8
        s_add_u32 {s(t0)}, {s(t0)}, {CSP}
        v_add_f32 {v(cs)}, {v(cs)}, {v(cs+1)}
        v_lshlrev_b32 {v(A)}, 2, {v(vLane)}
        v_add_u32 {v(A+1)}, {s(t0)}, {v(A)}
        ds_write_b32 {v(A+1)}, {v(cs)}
        v_add_u32 {v(A+1)}, {CSP}, {v(A)}
        v_add_u32 {v(A)}, {TAB_CS1}, {v(A)}
        s_waitcnt lgkmcnt(0)
        s_barrier
        """)
        for w in range(8): a(f"ds_read_b32 {v(A+2+w)}, {v(A+1)} offset:{w*256}")
        self.finstats(self.vS, self.vQ, A + 10)
        a("s_waitcnt lgkmcnt(0)")
        for w in range(1, 8): a(f"v_add_f32 {v(A+2)}, {v(A+2)}, {v(A+2+w)}")
        a(f"ds_write_b32 {v(A)}, {v(A+2)}")
        a("s_waitcnt lgkmcnt(0)")

    def finstats(self, S, Q, tmp):
        a = self.a
        a(f"""
        v_mov_b32 {v(tmp)}, {v(S)}
        v_mov_b32 {v(tmp+1)}, {v(Q)}
        s_nop 1
        v_permlane32_swap_b32 {v(S)}, {v(tmp)}
        v_permlane32_swap_b32 {v(Q)}, {v(tmp+1)}
        v_add_f32 {v(S)}, {v(S)}, {v(tmp)}
        v_add_f32 {v(Q)}, {v(Q)}, {v(tmp+1)}
        v_mul_f32 {v(S)}, {hexf(1/640)}, {v(S)}
        v_mul_f32 {v(Q)}, {hexf(1/640)}, {v(Q)}
        v_fma_f32 {v(Q)}, -{v(S)}, {v(S)}, {v(Q)}
        v_max_f32 {v(Q)}, 0, {v(Q)}
        v_add_f32 {v(Q)}, {hexf(1e-5)}, {v(Q)}
        v_rsq_f32 {v(self.vRstd)}, {v(Q)}
        s_nop 0
        v_mul_f32 {v(self.vNm)}, -1.0, {v(self.vRstd)}
        v_mul_f32 {v(self.vNm)}, {v(S)}, {v(self.vNm)}
        """)

    def loadstats(self, sT, dst):
        a = self.a
        a(f"""
        s_lshl_b32 {s(t5)}, {s(sT)}, 11
        s_add_u32 {s(t5)}, {s(t5)}, {STATS}
        buffer_load_dwordx4 {v(dst,4)}, {v(vL16)}, {s(S_WS,4)}, {s(t5)} offen sc1
        buffer_load_dwordx4 {v(dst+4,4)}, {v(vL16)}, {s(S_WS,4)}, {s(t5)} offen offset:1024 sc1
        """)
        self.vm.issue(); return self.vm.issue()

    def usestats(self, src):
        a = self.a
        a(f"""
        v_add_f32 {v(self.vS)}, {v(src)}, {v(src+2)}
        v_add_f32 {v(self.vQ)}, {v(src+1)}, {v(src+3)}
        v_add_f32 {v(src+4)}, {v(src+4)}, {v(src+6)}
        v_add_f32 {v(src+5)}, {v(src+5)}, {v(src+7)}
        v_add_f32 {v(self.vS)}, {v(self.vS)}, {v(src+4)}
        v_add_f32 {v(self.vQ)}, {v(self.vQ)}, {v(src+5)}
        """)
        self.finstats(self.vS, self.vQ, src)

    KEEP = 48
    WREG = 88
    RAW = 88
    RL = 112
    HT = 132
    QM, QT = 136, 140
    DBG, PF = 142, 142
    OACC = 144
    SA, SB = 160, 192
    KM0, KM1, KT = 224, 228, 232
    vPa, vPd = vL16b, vL16c
    VF = [236, 240, 244, 248]
    aK, aT, aV = vL16, vAKt, 252

    def epi1(self):
        a = self.a
        ACC = self.ACC
        CS = 192
        rq, nq = self.vS, self.vQ
        KM, VM, KVT = CS, CS + 4, CS + 8
        VT = self.SA
        a.label("L_epi1")
        a(f"v_lshlrev_b32 {v(vT)}, 4, {v(vHH)}")
        a(f"v_add_u32 {v(vT)}, {TAB_CS1}, {v(vT)}")
        for q in range(8): a(f"ds_read_b128 {v(CS+4*q,4)}, {v(vT)} offset:{32*q}")
        a(f"""
        v_and_b32 {v(vT)}, 28, {v(vF32)}
        global_load_dword {v(self.DBG)}, {v(vT)}, {s(P_DBG,2)} offset:64 sc1
        v_lshlrev_b32 {v(self.vPa)}, 5, {v(vT)}
        """)
        self.kv_pollissue()
        c = math.log2(math.e) / math.sqrt(20.0)
        a(f"v_mul_f32 {v(rq)}, {hexf(c)}, {v(self.vRstd)}")
        a(f"v_mul_f32 {v(nq)}, {hexf(c)}, {v(self.vNm)}")
        def quad(q, r, n):
            for i in range(4): a(f"v_mul_f32 {v(CS+4*q+i)}, {v(n)}, {v(CS+4*q+i)}")
            for i in range(4): a(f"v_fma_f32 {v(ACC+4*q+i)}, {v(ACC+4*q+i)}, {v(r)}, {v(CS+4*q+i)}")
        def cvt(dst, q):
            a(f"v_cvt_pk_bf16_f32 {v(dst)}, {v(ACC+4*q)}, {v(ACC+4*q+1)}")
            a(f"v_cvt_pk_bf16_f32 {v(dst+1)}, {v(ACC+4*q+2)}, {v(ACC+4*q+3)}")
        a("s_waitcnt lgkmcnt(3)")
        for q in range(5): quad(q, self.vRstd, self.vNm)
        cvt(VM, 2); cvt(VM + 2, 3); cvt(KVT, 4); cvt(KM, 0); cvt(KM + 2, 1)
        a(f"v_mfma_f32_32x32x16_bf16 {v(VT,16)}, {v(VM,4)}, {v(SEL1,4)}, 0")
        a(f"v_mfma_f32_32x32x8_bf16 {v(VT,16)}, {v(KVT,2)}, {v(SEL2,2)}, {v(VT,16)}")
        a(f"""
        s_mul_i32 {s(t0)}, {s(sX)}, {KVB}
        s_add_u32 {s(t0)}, {s(t0)}, {s(sKV)}
        buffer_store_dwordx4 {v(KM,4)}, {v(vAKw)}, {s(S_WS,4)}, {s(t0)} offen sc1
        ds_write_b128 {v(vAKw)}, {v(KM,4)} offset:{kvslot(0)}
        s_mov_b32 exec_hi, 0
        buffer_store_dwordx2 {v(KVT,2)}, {v(vATw)}, {s(S_WS,4)}, {s(t0)} offen offset:2368 sc1
        ds_write_b64 {v(vATw)}, {v(KVT,2)} offset:{kvslot(0)+2368}
        s_mov_b64 exec, -1
        s_waitcnt lgkmcnt(2)
        """)
        for q in range(5, 8): quad(q, rq, nq)
        VP = CS + 12
        for i in range(8): a(f"v_cvt_pk_bf16_f32 {v(VP+i)}, {v(VT+2*i)}, {v(VT+2*i+1)}")
        for i in range(8): a(f"v_or_b32 {v(VP+i)}, {v(VP+i)}, {v(vOnesM)}")
        a(f"""
        s_mov_b32 exec_lo, 0x1fffff
        s_mov_b32 exec_hi, 0x1fffff
        buffer_store_dwordx4 {v(VP,4)}, {v(vAVw)}, {s(S_WS,4)}, {s(t0)} offen offset:1024 sc1
        buffer_store_dwordx4 {v(VP+4,4)}, {v(vAVw)}, {s(S_WS,4)}, {s(t0)} offen offset:1696 sc1
        ds_write_b128 {v(vAVw)}, {v(VP,4)} offset:{kvslot(0)+1024}
        ds_write_b128 {v(vAVw)}, {v(VP+4,4)} offset:{kvslot(0)+1696}
        s_mov_b64 exec, -1
        """)
        cvt(self.QT, 5); cvt(self.QM, 6); cvt(self.QM + 2, 7)

    def repack_issue(self):
        a = self.a
        A, B, C = 138, 139, 140
        a(f"""
        s_lshl_b32 {s(sUnit)}, {s(sW)}, 8
        s_add_u32 {s(sUnit)}, {s(sUnit)}, s2
        s_min_u32 {s(sUnit)}, {s(sUnit)}, 863
        s_mov_b32 {s(S_RAW+3)}, 0x20000
        s_mul_i32 {s(sM0A)}, {s(sW)}, 6144
        s_add_u32 {s(sM0A)}, {s(sM0A)}, {RPK}
        s_cmp_lt_u32 {s(sUnit)}, 384
        s_cbranch_scc1 L_ri_w2
        s_cmp_lt_u32 {s(sUnit)}, 704
        s_cbranch_scc1 L_ri_w1
        ; ---- wo
        s_mov_b32 {s(S_RAW)}, {s(P_WO)}
        s_mov_b32 {s(S_RAW+1)}, {s(P_WO+1)}
        s_mov_b32 {s(S_RAW+2)}, 819200
        s_sub_u32 {s(t5)}, {s(sUnit)}, 704
        s_mul_i32 {s(sSoA)}, {s(t5)}, 5120
        s_add_u32 {s(sSoA)}, {s(sSoA)}, {W3P}
        s_mul_i32 {s(t4)}, {s(t5)}, 3277
        s_lshr_b32 {s(t4)}, {s(t4)}, 16              ; c
        s_mul_i32 {s(t0)}, {s(t4)}, 20
        s_sub_u32 {s(t5)}, {s(t5)}, {s(t0)}          ; s
        s_mul_i32 {s(t0)}, {s(t5)}, 40
        s_mul_i32 {s(t6)}, {s(t5)}, 160
        s_sub_u32 {s(t6)}, {s(t6)}, {16*160-16}
        s_mov_b32 {s(t1)}, 20
        s_cmp_lt_u32 {s(t5)}, 16
        s_cselect_b32 {s(t0)}, {s(t0)}, {s(t6)}
        s_cselect_b32 {s(t2)}, 4, 2
        s_cselect_b32 {s(t3)}, 15, 3
        s_branch L_ri_a
        """)
        a.label("L_ri_w2")
        a(f"""
        s_mov_b32 {s(S_RAW)}, {s(P_W2)}
        s_mov_b32 {s(S_RAW+1)}, {s(P_W2+1)}
        s_mov_b32 {s(S_RAW+2)}, 1966080
        s_mul_i32 {s(sSoA)}, {s(sUnit)}, 5120
        s_add_u32 {s(sSoA)}, {s(sSoA)}, {W5P}
        s_mul_i32 {s(t4)}, {s(sUnit)}, 1366
        s_lshr_b32 {s(t4)}, {s(t4)}, 16              ; c = u/48
        s_mul_i32 {s(t0)}, {s(t4)}, 48
        s_sub_u32 {s(t0)}, {s(sUnit)}, {s(t0)}
        s_lshl_b32 {s(t0)}, {s(t0)}, 5
        s_mov_b32 {s(t1)}, 0
        s_mov_b32 {s(t2)}, 5
        s_mov_b32 {s(t3)}, 31
        """)
        a.label("L_ri_a")
        a(f"""
        s_mul_i32 {s(t0)}, {s(t0)}, 1280
        s_mul_i32 {s(t4)}, {s(t4)}, 160
        s_add_u32 {s(t0)}, {s(t0)}, {s(t4)}
        """)
        for ii in range(5):
            a(f"""
            v_add_u32 {v(A)}, {64*ii}, {v(vLane)}
            v_mul_u32_u24 {v(B)}, 6554, {v(A)}
            v_lshrrev_b32 {v(B)}, 16, {v(B)}          ; row
            v_mul_u32_u24 {v(C)}, 10, {v(B)}
            v_sub_u32 {v(A)}, {v(A)}, {v(C)}          ; piece
            v_lshrrev_b32 {v(C)}, {s(t2)}, {v(B)}
            v_and_b32 {v(B)}, {s(t3)}, {v(B)}
            v_mad_u32_u24 {v(B)}, {v(C)}, {s(t1)}, {v(B)}
            v_mul_u32_u24 {v(B)}, 1280, {v(B)}
            v_lshl_add_u32 {v(A)}, {v(A)}, 4, {v(B)}
            buffer_load_dwordx4 {v(self.RAW+4*ii,4)}, {v(A)}, {s(S_RAW,4)}, {s(t0)} offen
            """)
        a("s_branch L_ri_e")
        a.label("L_ri_w1")
        a(f"""
        s_mov_b32 {s(S_RAW)}, {s(P_W1)}
        s_mov_b32 {s(S_RAW+1)}, {s(P_W1+1)}
        s_mov_b32 {s(S_RAW+2)}, 1966080
        s_sub_u32 {s(t5)}, {s(sUnit)}, 384
        s_mul_i32 {s(sSoA)}, {s(t5)}, 6144
        s_add_u32 {s(sSoA)}, {s(sSoA)}, {W4P}
        s_mul_i32 {s(sSoB)}, {s(t5)}, 384
        s_add_u32 {s(sSoB)}, {s(sSoB)}, {CS4P}
        s_mul_i32 {s(t4)}, {s(t5)}, 3277
        s_lshr_b32 {s(t4)}, {s(t4)}, 16              ; c
        s_mul_i32 {s(t0)}, {s(t4)}, 20
        s_sub_u32 {s(t0)}, {s(t5)}, {s(t0)}          ; sp
        s_mul_i32 {s(t0)}, {s(t0)}, {32*3072}
        s_mul_i32 {s(t4)}, {s(t4)}, 192
        s_add_u32 {s(t0)}, {s(t0)}, {s(t4)}
        """)
        for i in range(6):
            a(f"""
            v_add_u32 {v(A)}, {64*i}, {v(vLane)}
            v_mul_u32_u24 {v(B)}, 5462, {v(A)}
            v_lshrrev_b32 {v(B)}, 16, {v(B)}          ; row = p/12
            v_mul_u32_u24 {v(B)}, {3072-192}, {v(B)}
            v_lshl_add_u32 {v(A)}, {v(A)}, 4, {v(B)}
            buffer_load_dwordx4 {v(self.RAW+4*i,4)}, {v(A)}, {s(S_RAW,4)}, {s(t0)} offen
            """)
        a.label("L_ri_e")
        a(f"""
        v_and_b32 {v(A)}, 15, {v(vLane)}
        v_mul_u32_u24 {v(A)}, 1280, {v(A)}
        v_lshrrev_b32 {v(B)}, 4, {v(vLane)}
        v_lshl_add_u32 {v(C)}, {v(B)}, 3, {v(A)}
        v_lshl_add_u32 {v(A)}, {v(B)}, 4, {v(A)}
        s_mul_i32 {s(t0)}, {s(sT16)}, {16*1280}
        s_mul_i32 {s(t1)}, {s(sC8)}, 160
        s_add_u32 {s(t0)}, {s(t0)}, {s(t1)}
        buffer_load_dwordx4 {v(self.RL,4)}, {v(A)}, {s(S_X,4)}, {s(t0)} offen
        buffer_load_dwordx4 {v(self.RL+4,4)}, {v(A)}, {s(S_X,4)}, {s(t0)} offen offset:64
        buffer_load_dwordx2 {v(self.RL+8,2)}, {v(C)}, {s(S_X,4)}, {s(t0)} offen offset:128
        """)

    def unpack_add(self, src, add):
        a = self.a
        for i in range(10):
            if add:
                a(f"v_lshlrev_b32 {v(vT)}, 16, {v(src+i)}")
                a(f"v_add_f32 {v(RES+2*i)}, {v(RES+2*i)}, {v(vT)}")
                a(f"v_and_b32 {v(vT)}, 0xffff0000, {v(src+i)}")
                a(f"v_add_f32 {v(RES+2*i+1)}, {v(RES+2*i+1)}, {v(vT)}")
            else:
                a(f"v_lshlrev_b32 {v(RES+2*i)}, 16, {v(src+i)}")
                a(f"v_and_b32 {v(RES+2*i+1)}, 0xffff0000, {v(src+i)}")

    def repack_do(self):
        a = self.a
        A, B, C = self.SA, self.SA + 1, self.SA + 2
        FR = self.SA + 8
        cs = self.SA + 4
        a(f"v_add_u32 {v(A)}, {s(sM0A)}, {v(vL16)}")
        for i in range(6): a(f"ds_write_b128 {v(A)}, {v(self.RAW+4*i,4)} offset:{1024*i}")
        self.unpack_add(self.RL, False)
        a("s_waitcnt lgkmcnt(0)")
        a(f"""
        s_lshl_b32 {s(t0)}, {s(sW)}, 8
        s_add_u32 {s(t0)}, {s(t0)}, s2
        s_cmp_ge_u32 {s(t0)}, 864
        s_cbranch_scc1 L_rd_e
        s_cmp_lt_u32 {s(sUnit)}, 384
        s_cbranch_scc1 L_rd_a
        s_cmp_lt_u32 {s(sUnit)}, 704
        s_cbranch_scc1 L_rd_b
        """)
        a.label("L_rd_a")
        a(f"""
        v_lshrrev_b32 {v(A)}, 4, {v(vLane)}
        v_bfe_u32 {v(B)}, {v(vLane)}, 2, 2
        v_lshl_add_u32 {v(A)}, {v(A)}, 3, {v(B)}
        v_mul_u32_u24 {v(A)}, 160, {v(A)}
        v_add_u32 {v(A)}, {s(sM0A)}, {v(A)}
        v_and_b32 {v(C)}, 3, {v(vLane)}
        v_lshl_add_u32 {v(B)}, {v(C)}, 3, {v(A)}
        v_lshl_add_u32 {v(A)}, {v(C)}, 4, {v(A)}
        """)
        for t in range(5):
            for ab in range(2):
                if t < 4: a(f"ds_read_b64_tr_b16 {v(FR+4*t+2*ab,2)}, {v(A)} offset:{64*(t>>1)+8*(t&1)+ab*640}")
                else: a(f"ds_read_b64_tr_b16 {v(FR+4*t+2*ab,2)}, {v(B)} offset:{128+ab*640}")
        a(f"s_add_u32 {s(t0)}, {s(sSoA)}, 4096")
        a("s_waitcnt lgkmcnt(0)")
        for t in range(4): a(f"buffer_store_dwordx4 {v(FR+4*t,4)}, {v(vL16)}, {s(S_WS,4)}, {s(sSoA)} offen offset:{1024*t} sc1")
        a(f"buffer_store_dwordx4 {v(FR+16,4)}, {v(vL16)}, {s(S_WS,4)}, {s(t0)} offen sc1")
        a("s_branch L_rd_e")
        a.label("L_rd_b")
        a(f"""
        v_bfe_u32 {v(B)}, {v(vLane)}, 2, 2
        v_lshl_add_u32 {v(A)}, {v(vHH)}, 3, {v(B)}
        v_mul_u32_u24 {v(A)}, 192, {v(A)}
        v_add_u32 {v(A)}, {s(sM0A)}, {v(A)}
        v_bfe_u32 {v(B)}, {v(vLane)}, 4, 1
        v_lshl_add_u32 {v(A)}, {v(B)}, 5, {v(A)}
        v_and_b32 {v(B)}, 1, {v(vLane)}
        v_lshl_add_u32 {v(A)}, {v(B)}, 4, {v(A)}
        v_bfe_u32 {v(B)}, {v(vLane)}, 1, 1
        v_lshl_add_u32 {v(A)}, {v(B)}, 3, {v(A)}
        """)
        for k in range(2):
            for t in range(3):
                for ab in range(2):
                    a(f"ds_read_b64_tr_b16 {v(FR+12*k+4*t+2*ab,2)}, {v(A)} offset:{k*16*192+ab*4*192+64*t}")
        for t in range(3): a(f"v_mov_b32 {v(cs+t)}, 0")
        a(f"s_add_u32 {s(t0)}, {s(sSoA)}, 4096")
        a("s_waitcnt lgkmcnt(0)")
        for f in range(6):
            so, off = (sSoA, 1024 * f) if f < 4 else (t0, 1024 * (f - 4))
            a(f"buffer_store_dwordx4 {v(FR+4*f,4)}, {v(vL16)}, {s(S_WS,4)}, {s(so)} offen offset:{off} sc1")
        for k in range(2):
            for r in range(4):
                for t in range(3):
                    a(f"v_dot2c_f32_bf16 {v(cs+t)}, {s(sOnes)}, {v(FR+12*k+4*t+r)}")
        a(f"""
        s_nop 2
        v_mov_b32 {v(cs+3)}, {v(cs+2)}
        v_lshlrev_b32 {v(A)}, 2, {v(vLane)}
        s_nop 0
        v_permlane32_swap_b32 {v(cs)}, {v(cs+1)}
        v_permlane32_swap_b32 {v(cs+2)}, {v(cs+3)}
        v_add_f32 {v(cs)}, {v(cs)}, {v(cs+1)}
        v_add_f32 {v(cs+2)}, {v(cs+2)}, {v(cs+3)}
        buffer_store_dword {v(cs)}, {v(A)}, {s(S_WS,4)}, {s(sSoB)} offen sc1
        buffer_store_dword {v(cs+2)}, {v(vF32)}, {s(S_WS,4)}, {s(sSoB)} offen offset:256 sc1
        """)
        a.label("L_rd_e")

    SCHED = {1: ["z0", "rk0"], 4: ["w1", "s3p", "rv3"], 7: ["z1", "rk1"], 11: ["s0", "rv0"],
             15: ["w1", "2bc", "rkt"], 23: ["s1", "rv1"], 28: ["s2", "rv2"]}

    def stepaddr(self, n):
        return kvslot(n >> 2) + (n & 3) * STEP

    def att_ops(self, n, X, Y, base):
        o0 = self.stepaddr(n) - base
        o1 = self.stepaddr(n + 1) - base
        o2 = self.stepaddr(n + 2) - base
        VF, O = self.VF, self.OACC
        sm = lambda vf, p: f"v_smfmac_f32_32x32x32_bf16 {v(O,16)}, {v(vf,4)}, {v(p,8)}, {v(vIdx)}"
        return {
            "z0": f"v_mfma_f32_32x32x16_bf16 {v(Y,16)}, {v(self.KM0,4)}, {v(self.QM,4)}, 0",
            "z1": f"v_mfma_f32_32x32x16_bf16 {v(Y+16,16)}, {v(self.KM1,4)}, {v(self.QM,4)}, 0",
            "2bc": f"v_mfma_f32_32x32x4_2b_bf16 {v(Y,32)}, {v(self.KT,2)}, {v(self.QT,2)}, {v(Y,32)}",
            "s0": sm(VF[0], X), "s1": sm(VF[1], X + 8), "s2": sm(VF[2], X + 16), "s3p": sm(VF[3], Y + 24),
            "rk0": (self.KM0, 4, self.aK, o2), "rk1": (self.KM1, 4, self.aK, o2 + TB),
            "rkt": (self.KT, 2, self.aT, o2 + 2368),
            "rv0": (VF[0], 4, self.aV, o1 + 1024), "rv1": (VF[1], 4, self.aV, o1 + 1696),
            "rv2": (VF[2], 4, self.aV, o1 + TB + 1024), "rv3": (VF[3], 4, self.aV, o0 + TB + 1696),
            "w1": "s_waitcnt lgkmcnt(1)",
        }

    def dsr(self, op):
        d, n, ar, off = op
        assert 0 <= off < 65536, off
        self.a(f"ds_read_b{32*n} {v(d,n)}, {v(ar)} offset:{off}")

    def att_segment(self, n0, n1, hooks, extras, prio, starthook):
        a = self.a
        def emit(x):
            if isinstance(x, str): a(x); return
            self.dsr(x)
        buf = lambda n: self.SA if n % 2 == 0 else self.SB
        p = self.att_ops(n0 - 2, buf(n0), buf(n0 + 1), 0)
        for k in ("rk0", "rk1", "rkt"): emit(p[k])
        p = self.att_ops(n0 - 1, buf(n0 - 1), buf(n0), 0)
        for k in ("rv0", "rv1", "rv2"): emit(p[k])
        a("s_waitcnt lgkmcnt(3)")
        emit(p["z0"]); emit(p["z1"]); emit(p["rk0"]); emit(p["rk1"])
        a("s_nop 7")
        emit(p["2bc"]); emit(p["rkt"])
        starthook()
        a("s_waitcnt lgkmcnt(0)")
        a("s_nop 15")
        for n in range(n0, n1):
            if n in hooks: hooks[n]()
            ops = self.att_ops(n, buf(n), buf(n + 1), 0)
            last, last2 = n == n1 - 1, n >= n1 - 2
            for e in range(32):
                for x in self.SCHED.get(e, []):
                    if n == n0 and x == "s3p": continue
                    if last and x in ("z0", "z1", "2bc", "rv0", "rv1", "rv2"): continue
                    if last2 and x in ("rk0", "rk1", "rkt"): continue
                    if x == "w1" and last2: a("s_waitcnt lgkmcnt(0)"); continue
                    emit(ops[x])
                if e == 1 and not self.opt.get("noprio"): a(f"s_setprio {prio[n]}")
                for f in extras.get((n, e), []): f()
                a(f"v_exp_f32 {v(buf(n)+e)}, {v(buf(n)+e)}")
        a("s_nop 1")
        emit(self.att_ops(n1, buf(n1), buf(n1 + 1), 0)["s3p"])

    def kv_setup(self, b):
        self.a(f"""
        s_add_u32 {s(t0)}, {s(sX)}, {b}
        s_and_b32 {s(t0)}, {s(t0)}, 7
        s_mul_i32 {s(t0)}, {s(t0)}, {KVB}
        s_add_u32 m0, {s(sWTB)}, {kvslot(b)}
        s_add_u32 {s(t0)}, {s(t0)}, {s(sWTB)}
        s_add_u32 {s(sKVs)}, {s(t0)}, {s(sKV)}
        """)

    def kv_piece(self, i):
        self.a(f"buffer_load_dwordx4 {v(vL16)}, {s(S_WS,4)}, {s(sKVs)} offen offset:{(0,1024,1600)[i]} sc1 lds")
        return self.vm.issue()

    def kv_dma(self, b):
        self.kv_setup(b)
        for i in range(3): self.kv_piece(i)

    def kv_pollissue(self):
        self.a(f"buffer_load_dword {v(self.vPd)}, {v(self.vPa)}, {s(S_WS,4)}, {s(sFKV)} offen sc1")

    def kv_mask(self):
        self.a(f"""
        s_add_u32 {s(t1)}, {s(sLayer)}, 1
        v_cmp_le_u32 vcc, {s(t1)}, {v(self.vPd)}
        s_lshr_b32 {s(sRdy)}, vcc_lo, {s(sX)}
        """)

    def outofline(self, f):
        main = self.a.lines; self.a.lines = self.ool0
        st = (self.vm.issued, self.vm.done, self.lg.issued, self.lg.done)
        f()
        self.vm.issued, self.vm.done, self.lg.issued, self.lg.done = st
        self.a.lines = main

    def kv_need(self, bits):
        a = self.a
        L, D = a.newlabel("Lneed"), a.newlabel("Lneedd")
        a(f"s_andn2_b32 {s(t0)}, {bits}, {s(sRdy)}\ns_cbranch_scc1 {L}")
        a.label(D)
        def f():
            a.label(L)
            self.kv_pollissue()
            a("s_waitcnt vmcnt(0)")
            self.kv_mask()
            a(f"""
            s_andn2_b32 {s(t0)}, {bits}, {s(sRdy)}
            s_cbranch_scc0 {D}
            s_sub_u32 {s(sSpin)}, {s(sSpin)}, 1
            s_cbranch_scc0 {L}
            s_mov_b32 {s(sSpin)}, 0
            s_branch {D}
            """)
        self.outofline(f)

    def attention(self):
        a = self.a
        HT = self.HT
        a(f"""
        v_cmp_lt_u32 vcc, 80, {v(vF32)}
        s_movk_i32 {s(t0)}, 96
        v_cmp_ne_u32 {s(sEx,2)}, {s(t0)}, {v(vF32)}
        v_mov_b32 {v(self.aV)}, 0x30000
        s_and_b64 vcc, vcc, {s(sEx,2)}
        s_mov_b32 {s(sRdy)}, 0
        s_mov_b32 {s(sDone)}, 0
        v_cndmask_b32 {v(self.aV)}, {v(vAVr)}, {v(self.aV)}, vcc
        """)
        for i in range(16): a(f"v_mov_b32 {v(self.OACC+i)}, 0")
        a("s_waitcnt lgkmcnt(0)\ns_barrier")
        self.stamp("att_start")

        def t0hook():
            L = a.newlabel("Lt0")
            a(f"s_cmp_eq_u32 {s(sLayer)}, 0\ns_cbranch_scc1 {L}\ns_waitcnt vmcnt(4)")
            self.kv_mask()
            a(f"s_andn2_b32 {s(t0)}, 2, {s(sRdy)}\ns_cbranch_scc1 {L}")
            self.kv_dma(1)
            a(f"s_mov_b32 {s(sDone)}, 1")
            a.label(L)
        def t1hook():
            LA, LB, L3 = a.newlabel("Lchk"), a.newlabel("Lchk"), a.newlabel("Lh")
            D = self.DBG
            a(f"s_waitcnt vmcnt(0)\nv_cmp_ne_u32 vcc, 1, {v(D)}\ns_cbranch_vccnz {LA}")
            a.label(LB)
            def f():
                a.label(LA)
                a(f"""
                v_and_b32 {v(vT)}, 28, {v(vF32)}
                global_load_dword {v(D)}, {v(vT)}, {s(P_DBG,2)} offset:64 sc1
                s_waitcnt vmcnt(0)
                v_cmp_ne_u32 vcc, 1, {v(D)}
                s_cbranch_vccz {LB}
                s_sub_u32 {s(sSpin)}, {s(sSpin)}, 1
                s_cbranch_scc0 {LA}
                s_mov_b32 {s(sSpin)}, 0
                s_branch {LB}
                """)
            self.outofline(f)
            L4 = a.newlabel("Lh")
            a(f"s_barrier\ns_cmp_eq_u32 {s(sW)}, 7\ns_cbranch_scc1 {L3}")
            a.label(L4)
            def g():
                a.label(L3)
                a(f"""
                s_lshl_b32 {s(t0)}, {s(sX)}, 7
                s_add_u32 {s(t0)}, {s(t0)}, {s(sFKV)}
                s_add_u32 {s(t1)}, {s(sLayer)}, 1
                """)
                self.flagstore(t0, s(t1), "sc1", HT + 2, HT + 3)
                a(f"s_branch {L4}")
            self.outofline(g)
            L = a.newlabel("Lt1")
            a(f"s_andn2_b32 {s(t0)}, 6, {s(sRdy)}\ns_cbranch_scc1 {L}")
            self.kv_dma(2)
            a(f"s_mov_b32 {s(sDone)}, 2")
            a.label(L)
        T1 = self.opt.get("t1", 2)
        pr0 = {0: 3, 1: 2, 2: 1, 3: 0} if T1 != 2 else {0: 1, 1: 0, 2: 1, 3: 0}
        self.att_segment(0, 4, {T1: t1hook}, {(3, 11): [self.kv_pollissue]}, pr0, t0hook)
        self.stamp("att_b0")
        L1, L2 = a.newlabel("Lgo"), a.newlabel("Lgo")
        a(f"s_cmp_eq_u32 {s(sDone)}, 2\ns_cbranch_scc1 {L2}")
        a("s_waitcnt vmcnt(0)")
        self.kv_mask()
        a(f"s_andn2_b32 {s(t0)}, 2, {s(sRdy)}\ns_cselect_b32 {s(t0)}, 1, {s(sDone)}\ns_cmp_lg_u32 {s(t0)}, 0\ns_cbranch_scc1 {L1}")
        self.kv_dma(1)
        a(f"s_mov_b32 {s(sDone)}, 1")
        a.label(L1)
        a(f"""
        s_lshr_b32 {s(t0)}, {s(sW)}, 2
        s_or_b32 {s(t0)}, {s(t0)}, {s(sLayer)}
        s_cmp_lg_u32 {s(t0)}, 0
        s_cbranch_scc1 L_norp2
        """)
        self.repack_do()
        a.label("L_norp2")
        L = a.newlabel("Lgo")
        a(f"s_cmp_lg_u32 {s(sDone)}, 0\ns_cbranch_scc1 {L}")
        self.kv_need(2)
        self.kv_dma(1)
        a.label(L)
        self.stamp("att_kvflag")
        a("s_waitcnt vmcnt(0)")
        a.label(L2)
        a("s_barrier")
        self.stamp("att_b1")
        def s1hook():
            L = a.newlabel("Larr")
            a(f"""
            s_xor_b32 {s(t0)}, {s(sW)}, 7
            s_or_b32 {s(t0)}, {s(t0)}, {s(sLayer)}
            s_cmp_lg_u32 {s(t0)}, 0
            s_cbranch_scc1 {L}
            s_lshl_b32 {s(t0)}, {s(sX)}, 5
            s_add_u32 {s(t0)}, {s(t0)}, {s(sJ)}
            s_lshl_b32 {s(t0)}, {s(t0)}, 2
            s_add_u32 {s(t0)}, {s(t0)}, {FRP}
            s_add_u32 {s(t1)}, {s(sXcc)}, 16
            """)
            self.flagstore(t0, s(t1), "sc1", HT + 2, HT + 3)
            a.label(L)
            L = a.newlabel("Lb2")
            a(f"s_cmp_eq_u32 {s(sDone)}, 2\ns_cbranch_scc1 {L}")
            self.kv_need(4)
            self.kv_dma(2)
            a.label(L)
        hooks, extras = {}, {}
        def add(n, e, f): extras.setdefault((n, e), []).append(f)
        tk = {}
        RPB = 2
        sA, sBq, sC = sSoA, sSoB, sM0A
        def rpcheck():
            L0, L1, L2 = a.newlabel("Lrp"), a.newlabel("Lrp"), a.newlabel("Lrp")
            self.wait(vt=tk["rp"])
            a(f"s_cmp_eq_u32 {s(sLayer)}, 0\ns_cbranch_scc1 {L0}")
            a.label(L2)
            def f():
                Lo, Hi = 234, 235
                a.label(L0)
                a(f"""
                v_min3_u32 {v(Lo)}, {v(HT)}, {v(HT+1)}, {v(HT+2)}
                v_min_u32 {v(Lo)}, {v(Lo)}, {v(HT+3)}
                v_cmp_gt_u32 vcc, 16, {v(Lo)}
                s_cbranch_vccz {L1}
                s_movk_i32 {s(t0)}, {FRP}
                buffer_load_dwordx4 {v(HT,4)}, {v(vL16)}, {s(S_WS,4)}, {s(t0)} offen sc1
                s_waitcnt vmcnt(0)
                s_sub_u32 {s(sSpin)}, {s(sSpin)}, 1
                s_cbranch_scc0 {L0}
                s_mov_b32 {s(sSpin)}, 0
                """)
                a.label(L1)
                a(f"""
                v_max3_u32 {v(Hi)}, {v(HT)}, {v(HT+1)}, {v(HT+2)}
                v_max_u32 {v(Hi)}, {v(Hi)}, {v(HT+3)}
                s_add_u32 {s(t0)}, {s(sXcc)}, 16
                v_cmp_eq_u32 vcc, {s(t0)}, {v(Lo)}
                s_mov_b64 {s(sEx,2)}, vcc
                v_cmp_eq_u32 vcc, {s(t0)}, {v(Hi)}
                s_and_b64 {s(sEx,2)}, {s(sEx,2)}, vcc
                s_lshl_b32 {s(t0)}, {s(sX)}, 3
                s_lshr_b64 {s(sEx,2)}, {s(sEx,2)}, {s(t0)}
                s_and_b32 {s(t0)}, {s(sEx)}, 0xff
                s_cmp_eq_u32 {s(t0)}, 0xff
                s_cselect_b32 {s(sFast)}, {0 if self.force_safe else 1}, 0
                s_branch {L2}
                """)
            self.outofline(f)
        ld = lambda txt: (lambda: (a(txt), self.vm.issue()))
        setup, ops = {b: [] for b in range(1, 8)}, {b: [] for b in range(1, 8)}
        POS = self.opt.get("pos", (11, 28, 7))
        for b in range(1, 6):
            setup[b].append(lambda b=b: (self.kv_need(1 << (b + 2)), self.kv_setup(b + 2)))
            for i in range(3):
                def pc(b=b, i=i): tk[b + 2] = self.kv_piece(i)
                ops[b].append(pc)
        def ldsgroup(b, n0, per, first):
            assert slot(n0 + 8 * per - 1) == slot(n0) + 8 * per - 1
            def st():
                a(f"s_mul_i32 {s(t0)}, {s(sW1k)}, {per}")
                a(f"s_add_u32 {'m0' if first else s(sC)}, {s(t0)}, {slot(n0)*1024}")
                if n0 + 8 * per <= N4: a(f"s_add_u32 {s(t1)}, {s(self.wbase[0])}, {n0*1024}")
                elif n0 >= N4: a(f"s_add_u32 {s(t1)}, {s(self.wbase[1])}, {(n0-N4)*1024}")
                else:
                    assert (N4 - n0) % per == 0
                    a(f"""
                    s_add_u32 {s(t1)}, {s(self.wbase[0])}, {n0*1024}
                    s_sub_u32 {s(t2)}, {s(self.wbase[1])}, {(N4-n0)*1024}
                    s_cmp_lt_u32 {s(sW)}, {(N4-n0)//per}
                    s_cselect_b32 {s(t1)}, {s(t1)}, {s(t2)}
                    """)
                a(f"s_add_u32 {s(sA)}, {s(t0)}, {s(t1)}")
            setup[b].append(st)
            if not first:
                prev = ops[b][-1]
                ops[b][-1] = lambda: (prev(), a(f"s_mov_b32 m0, {s(sC)}"))
            for i in range(per):
                ops[b].append(ld(f"buffer_load_dwordx4 {v(vL16)}, {s(S_WS,4)}, {s(sA)} offen offset:{1024*i} sc1 lds"))
        def reggroup(b, i0, cnt):
            setup[b].append(lambda: a(f"""
                s_mul_i32 {s(t0)}, {s(sW1k)}, {cnt}
                s_add_u32 {s(t0)}, {s(t0)}, {(NREG0-N4+8*i0)*1024}
                s_add_u32 {s(sBq)}, {s(t0)}, {s(self.wbase[1])}
                """))
            for i in range(cnt):
                ops[b].append(ld(f"buffer_load_dwordx4 {v(self.WREG+4*(i0+i),4)}, {v(vL16)}, {s(S_WS,4)}, {s(sBq)} offen offset:{1024*i} sc1"))
        self.reggroups = [(0, 3), (3, 4), (7, 4)]
        for g in range(3):
            ldsgroup(RPB + g, 32 * g, 4, False)
            reggroup(RPB + g, *self.reggroups[g])
        ldsgroup(6, 96, 2, True)
        ldsgroup(7, 112, 3, True)
        TA = [253, 254, 255]
        def touch(r, lo, n):
            def f():
                a(f"s_bfm_b64 exec, {n}, {lo}")
                a(f"buffer_load_dword {v(self.PF)}, {v(r)}, {s(S_WS,4)}, 0 offen sc1\ns_mov_b64 exec, -1")
                self.vm.issue()
            return f
        setup[1].append(lambda: self.touchaddr(TA[0], TA[1]))
        if not self.opt.get("x_notouch"):
            ops[1] += [touch(TA[0], 0, 18), touch(TA[0], 18, 17)]
            ops[5] += [None, touch(TA[1], 0, 20), None, None, touch(TA[1], 20, 20)]
            ops[6] += [None, touch(TA[0], 0, 18), None, None, touch(TA[0], 18, 17)]
        def rpload():
            a(f"s_movk_i32 {s(t0)}, {FRP}")
            a(f"buffer_load_dwordx4 {v(HT,4)}, {v(vL16)}, {s(S_WS,4)}, {s(t0)} offen sc1")
            tk["rp"] = self.vm.issue()
        add(4 * RPB + 1, 1, rpload)
        def mk_bar(b):
            def h():
                if b == RPB: rpcheck()
                if b == 1: self.vm.waitall(); self.kv_mask()
                elif b + 1 in tk: self.wait(vt=tk[b + 1])
                for f in setup[b]: f()
                a("s_barrier")
            return h
        for b in range(1, 8):
            hooks[4 * b + 2] = mk_bar(b)
            nsteps = min(4, 32 - (4 * b + 2))
            per = -(-len(ops[b]) // nsteps)
            assert per <= len(POS)
            pos = sorted(POS[:max(per, 2)])
            free = [(4 * b + 2 + i, e) for i in range(nsteps) for e in pos]
            for (n, e), f in zip(free, ops[b]):
                if f and not self.opt.get("x_none"): add(n, e, f)
        if self.opt.get("x_st"):
            for b in range(2, 8):
                add(4 * b + 1, 31, lambda b=b: self.stamp(f"blk{b}"))
        pr = {n: 3 - ((n - 2) & 3) for n in range(4, 32)}
        self.att_segment(4, 32, hooks, extras, pr, s1hook)
        self.stamp("att_end")
        O = self.OACC
        Z = self.HT
        a.label("L_att_fin")
        a(f"s_nop 11\nv_mul_f32 {v(Z)}, 0, {v(O)}")
        a(f"s_mov_b32 exec_lo, 0\nv_mov_b32 {v(O+12)}, {v(O+8)}\ns_mov_b32 exec_lo, -1")
        for i in range(1, 12): a(f"v_fma_f32 {v(Z)}, {v(O+i)}, 0, {v(Z)}")
        a(f"""
        v_add_f32 {v(Z)}, {v(Z)}, {v(O+12)}
        v_cmp_nle_f32 vcc, {hexf(2.0**-16)}, {v(Z)}
        s_mov_b64 {s(sEx,2)}, vcc
        v_cmp_nge_f32 vcc, {hexf(2.0**64)}, {v(Z)}
        s_or_b64 vcc, vcc, {s(sEx,2)}
        """)
        if self.force_slow: a("s_branch L_slow")
        a("s_cbranch_vccnz L_slow")
        a.label("L_att_norm")
        a(f"v_rcp_f32 {v(Z)}, {v(O+12)}\ns_nop 0")
        for i in range(12): a(f"v_mul_f32 {v(O+i)}, {v(O+i)}, {v(Z)}")
        P = self.SA
        for i in range(6): a(f"v_cvt_pk_bf16_f32 {v(P+i)}, {v(O+2*i)}, {v(O+2*i+1)}")
        a(f"""
        s_lshl_b32 {s(t0)}, {s(sT32)}, 7
        s_lshl_b32 {s(t1)}, {s(sJ)}, 2
        s_add_u32 {s(t0)}, {s(t0)}, {s(t1)}
        s_add_u32 {s(t1)}, {s(sLayer)}, 1
        """)
        def em(fl):
            a(f"""
            buffer_store_dwordx4 {v(P,4)}, {v(vOm)}, {s(S_WS,4)}, 0 offen {fl}
            s_mov_b32 exec_hi, 0
            buffer_store_dwordx2 {v(P+4,2)}, {v(vOt)}, {s(S_WS,4)}, 0 offen {fl}
            s_mov_b64 exec, -1
            s_waitcnt vmcnt(0)
            """)
            self.flagstore(t0, s(t1), fl, self.HT, self.HT + 1)
        self.dual(em)
        self.vm.reset()
        a(f"v_add_u32 {v(vL16b)}, 0x10000, {v(vL16)}\nv_add_u32 {v(vL16c)}, 0x20000, {v(vL16)}")
        a("s_barrier")
        self.stamp("att_pub")

    def touchaddr(self, A, B):
        a = self.a
        a(f"""
        s_lshl_b32 {s(t0)}, {s(sJ)}, 3
        s_add_u32 {s(t0)}, {s(t0)}, {s(sW)}
        s_lshl_b32 {s(t1)}, {s(sX)}, 8
        s_add_u32 {s(t0)}, {s(t0)}, {s(t1)}
        s_mul_i32 {s(t1)}, {s(t0)}, {24*128}
        s_add_u32 {s(t1)}, {s(t1)}, {WS_H}
        s_mul_i32 {s(t2)}, {s(t0)}, {10*128}
        s_add_u32 {s(t2)}, {s(t2)}, {WS_X - 24*128}
        s_lshl_b32 {s(t3)}, {s(t0)}, 6
        s_add_u32 {s(t3)}, {s(t3)}, {STATS}
        v_mov_b32 {v(A)}, {s(t2)}
        s_mov_b64 exec, 0xffffff
        v_mov_b32 {v(A)}, {s(t1)}
        s_mov_b64 exec, -1
        s_and_b32 {s(t0)}, {s(sJ)}, 24
        s_add_u32 {s(t0)}, {s(t0)}, {s(sW)}
        s_mul_i32 {s(t0)}, {s(t0)}, {40*128}
        s_add_u32 {s(t0)}, {s(t0)}, {s(self.wbase[2])}
        v_lshl_add_u32 {v(A)}, {v(vLane)}, 7, {v(A)}
        v_lshl_add_u32 {v(B)}, {v(vLane)}, 7, {s(t0)}
        v_writelane_b32 {v(A)}, {s(t3)}, 34
        """)

    def wback(self, groups):
        a = self.a
        for i0, cnt in groups:
            n = NREG0 + 8 * i0
            assert slot(n + 8 * cnt - 1) == slot(n) + 8 * cnt - 1
            a(f"s_mul_i32 {s(t0)}, {s(sW1k)}, {cnt}\ns_add_u32 {s(t0)}, {s(t0)}, {slot(n)*1024}\nv_add_u32 {v(vT)}, {s(t0)}, {v(vL16)}")
            for i in range(cnt): a(f"ds_write_b128 {v(vT)}, {v(self.WREG+4*(i0+i),4)} offset:{1024*i}")

    def kback(self):
        a = self.a
        a(f"s_lshl_b32 {s(t0)}, {s(sW1k)}, 1\ns_add_u32 {s(t0)}, {s(t0)}, {W1SLOT*1024}\nv_add_u32 {v(vT)}, {s(t0)}, {v(vL16)}")
        for i in range(5):
            if i == 3: a(f"v_add_u32 {v(vT)}, {3*16384}, {v(vT)}")
            for t in range(2): a(f"ds_write_b128 {v(vT)}, {v(self.KEEP+8*i+4*t,4)} offset:{(i%3)*16384+t*1024}")

    def slowpath(self):
        a = self.a
        S, O, M = self.SA, self.OACC, self.HT
        a.label("L_slow")
        a(f"s_waitcnt vmcnt(0) lgkmcnt(0)\nv_mov_b32 {v(M)}, 0xff800000")
        for ps in range(2):
            L = f"L_slow{ps}"
            a(f"s_mov_b32 {s(t0)}, {s(sKV)}\ns_mov_b32 {s(t1)}, 32")
            if ps == 1:
                for i in range(16): a(f"v_mov_b32 {v(O+i)}, 0")
            a.label(L)
            a(f"""
            s_add_u32 {s(t2)}, {s(t0)}, {TB}
            buffer_load_dwordx4 {v(self.KM0,4)}, {v(vL16)}, {s(S_WS,4)}, {s(t0)} offen sc1
            buffer_load_dwordx4 {v(self.KM1,4)}, {v(vL16)}, {s(S_WS,4)}, {s(t2)} offen sc1
            buffer_load_dwordx2 {v(self.KT,2)}, {v(vAKt)}, {s(S_WS,4)}, {s(t0)} offen offset:2368 sc1
            """)
            if ps == 1:
                for f in range(4):
                    a(f"buffer_load_dwordx4 {v(self.VF[f],4)}, {v(vAVr)}, {s(S_WS,4)}, {s(t2 if f >= 2 else t0)} offen offset:{1024+672*(f&1)} sc1")
            ops = self.att_ops(0, self.SB, S, 0)
            a("s_waitcnt vmcnt(0)")
            a(ops["z0"]); a(ops["z1"]); a("s_nop 9"); a(ops["2bc"]); a("s_nop 15\ns_nop 3")
            if ps == 0:
                for i in range(16): a(f"v_max3_f32 {v(M)}, {v(S+2*i)}, {v(S+2*i+1)}, {v(M)}")
            else:
                for i in range(32): a(f"v_sub_f32 {v(S+i)}, {v(S+i)}, {v(M)}")
                for i in range(32): a(f"v_exp_f32 {v(S+i)}, {v(S+i)}")
                a("s_nop 1")
                for f in range(4):
                    a(f"v_smfmac_f32_32x32x32_bf16 {v(O,16)}, {v(self.VF[f],4)}, {v(S+8*f,8)}, {v(vIdx)}")
                a("s_nop 7")
            a(f"""
            s_add_u32 {s(t0)}, {s(t0)}, {2*TB}
            s_sub_u32 {s(t1)}, {s(t1)}, 1
            s_cmp_lg_u32 {s(t1)}, 0
            s_cbranch_scc1 {L}
            """)
            if ps == 0:
                a(f"""
                v_mov_b32 {v(M+1)}, {v(M)}
                s_nop 1
                v_permlane32_swap_b32 {v(M)}, {v(M+1)}
                v_max_f32 {v(M)}, {v(M)}, {v(M+1)}
                """)
        a("s_nop 7\ns_branch L_att_norm")

    def gemm(self, nk, nt, n0, mf, acc, accn, AB, BB, depth, sBase, bars, pre_reads_done, extra=None, zero_first=False):
        a = self.a
        lt, vt = self.g_lt, {}
        def bload(k):
            if k and k % 4 == 0: a(f"s_add_u32 {s(sBase)}, {s(sBase)}, 4096")
            a(f"buffer_load_dwordx4 {v(BB+4*(k%depth),4)}, {v(vL16)}, {s(S_WS,4)}, {s(sBase)} offen offset:{(k%4)*1024} sc1")
            vt[k] = self.vm.issue()
        for k in range(min(depth - 1, nk)): bload(k)
        if extra and -1 in extra: extra[-1]()
        lpos = self.opt.get("lpos", 0)
        lpos = min(lpos, nt - 1)
        for k in range(nk):
            self.wait(vt=vt[k], lt=lt[k])
            if k in bars: a("s_barrier")
            for t in range(nt):
                c = "0" if (zero_first and k == 0) else v(acc + accn * t, accn)
                if not self.opt.get("nomfma"):
                    a(f"{mf} {v(acc+accn*t,accn)}, {v(AB+4*(nt*(k%3)+t),4)}, {v(BB+4*(k%depth),4)}, {c}")
                if k + 2 < nk: self.aread(k + 2, t, nt, n0, AB)
                if t == lpos and k + depth - 1 < nk: bload(k + depth - 1)
            if extra and k in extra: extra[k]()

    def aread(self, k, t, nt, n0, AB):
        ar, off = self.ldsaddr(slot(n0 + nt * k + t) * 1024)
        self.a(f"ds_read_b128 {v(AB+4*(nt*(k%3)+t),4)}, {v(ar)} offset:{off}")
        self.g_lt[k] = self.lg.issue()

    def gemm_pre(self, nt, n0, AB):
        self.g_lt = {}
        self.lg.reset()
        for k in range(2):
            for t in range(nt): self.aread(k, t, nt, n0, AB)

    MF16 = "v_mfma_f32_16x16x32_bf16"
    MF32 = "v_mfma_f32_32x32x16_bf16"

    def publish_x(self, valexpr):
        a = self.a
        P = 136
        S, Q = P + 12, P + 14
        a("s_nop 5")
        for i in range(10): a(f"v_cvt_pk_bf16_f32 {v(P+i)}, {v(RES+2*i)}, {v(RES+2*i+1)}")
        a(f"""
        s_lshr_b32 {s(t0)}, {s(sT16)}, 1
        s_lshl_b32 {s(t0)}, {s(t0)}, 7
        s_and_b32 {s(t1)}, {s(sT16)}, 1
        s_lshl_b32 {s(t1)}, {s(t1)}, 2
        s_add_u32 {s(t0)}, {s(t0)}, {s(t1)}
        s_lshl_b32 {s(t1)}, {s(sC8)}, 3
        s_add_u32 {s(t0)}, {s(t0)}, {s(t1)}
        s_add_u32 {s(t0)}, {s(t0)}, {FX}
        """)
        def em(fl):
            a(f"""
            buffer_store_dwordx4 {v(P,4)}, {v(vXm)}, {s(S_WS,4)}, 0 offen {fl}
            buffer_store_dwordx4 {v(P+4,4)}, {v(vXm)}, {s(S_WS,4)}, 0 offen offset:2048 {fl}
            buffer_store_dwordx2 {v(P+8,2)}, {v(vXt)}, {s(S_WS,4)}, 0 offen {fl}
            v_pk_add_f32 {v(S,2)}, {v(RES,2)}, {v(RES+2,2)}
            v_pk_mul_f32 {v(Q,2)}, {v(RES,2)}, {v(RES,2)}
            v_pk_fma_f32 {v(Q,2)}, {v(RES+2,2)}, {v(RES+2,2)}, {v(Q,2)}
            """)
            for i in range(2, 10):
                a(f"v_pk_add_f32 {v(S,2)}, {v(S,2)}, {v(RES+2*i,2)}")
                a(f"v_pk_fma_f32 {v(Q,2)}, {v(RES+2*i,2)}, {v(RES+2*i,2)}, {v(Q,2)}")
            a(f"""
            v_add_f32 {v(S)}, {v(S)}, {v(S+1)}
            v_add_f32 {v(Q)}, {v(Q)}, {v(Q+1)}
            s_nop 1
            v_permlane32_swap_b32 {v(S)}, {v(Q)}
            v_add_f32 {v(S)}, {v(S)}, {v(Q)}
            v_mov_b32 {v(Q)}, {v(S)}
            s_nop 1
            v_permlane16_swap_b32 {v(S)}, {v(Q)}
            v_add_f32 {v(S)}, {v(S)}, {v(Q)}
            buffer_store_dword {v(S)}, {v(vSt)}, {s(S_WS,4)}, 0 offen {fl}
            s_barrier
            s_waitcnt vmcnt(0)
            """)
            self.flagstore(t0, valexpr, fl, P + 16, P + 17)
        self.dual(em)
        self.vm.reset()

    P5BARS = [5, 13, 21, 29, 37]

    def chain_compute(self):
        a = self.a
        AB, BB = 156, 216
        D3, D4, D5 = self.opt.get("d3", 8), self.opt.get("d4", 8), self.opt.get("d5", 8)
        sB = sSoB
        a("s_setprio 1")
        assert NREG0 + 8 * self.reggroups[0][1] <= NSLOT
        self.wback(self.reggroups[:1])
        self.gemm_pre(5, N3, AB)
        a(f"""
        s_lshr_b32 {s(t0)}, {s(sT16)}, 1
        s_lshl_b32 {s(t0)}, {s(t0)}, 7
        s_add_u32 {s(t1)}, {s(sLayer)}, 1
        s_mul_i32 {s(sB)}, {s(sT16)}, {OST}
        s_add_u32 {s(sB)}, {s(sB)}, {WS_O}
        """)
        self.poll(vF32, t0, s(t1), 136)
        self.stamp("p3_flag")
        self.gemm(20, 5, N3, self.MF16, RES, 4, AB, BB, D3, sB, set(), True)
        self.stamp("p3_loop")
        a(f"s_lshl_b32 {s(t2)}, {s(sLayer)}, 1\ns_add_u32 {s(t2)}, {s(t2)}, 1")
        self.publish_x(s(t2))
        self.stamp("p3_pub")
        if self.stop == "p3": a("s_branch L_done")
        self.wback(self.reggroups[1:])
        AB, BB = 136, 172
        ACC = 208
        ST = 88
        K4B = (NREG0 + 8 * self.reggroups[0][1] - N4) // 3 - 2
        self.gemm_pre(3, N4, AB)
        a(f"""
        s_lshl_b32 {s(t0)}, {s(sT32c)}, 7
        s_add_u32 {s(t0)}, {s(t0)}, {FX}
        s_mul_i32 {s(sB)}, {s(sT32c)}, 40960
        s_add_u32 {s(sB)}, {s(sB)}, {WS_X}
        """)
        self.poll(vF16, t0, s(t2), ST)
        self.stamp("p4_flag")
        tks = {}
        def ld(): tks["s"] = self.loadstats(sT32c, ST)
        def us():
            self.wait(vt=tks["s"]); self.usestats(ST)
        assert D4 <= 9
        self.gemm(40, 3, N4, self.MF32, ACC, 16, AB, BB, D4, sB, {K4B}, True, extra={4: ld, 14: us}, zero_first=True)
        a("s_barrier")
        self.stamp("p4_loop")
        B2 = 112
        a(f"""
        v_lshrrev_b32 v122, 4, {v(vLane)}
        s_mul_i32 {s(t1)}, {s(sC8)}, 160
        v_lshl_add_u32 v123, v122, 3, {s(t1)}
        v_lshl_add_u32 v122, v122, 4, {s(t1)}
        global_load_dwordx4 {v(B2,4)}, v122, {s(P_B2,2)}
        global_load_dwordx4 {v(B2+4,4)}, v122, {s(P_B2,2)} offset:64
        global_load_dwordx2 {v(B2+8,2)}, v123, {s(P_B2,2)} offset:128
        """)
        TC, TBb = 136, 152
        a(f"v_lshlrev_b32 {v(vT)}, 4, {v(vHH)}\nv_add_u32 {v(vT)}, {TAB_CS4}, {v(vT)}")
        self.lg.reset()
        tl = {}
        def tabs(t):
            o = 32 * (t & 1)
            for u in range(4):
                a(f"ds_read_b128 {v(TC+o+4*u,4)}, {v(vT)} offset:{(32*t+8*u)*4}"); self.lg.issue()
                a(f"ds_read_b128 {v(TBb+o+4*u,4)}, {v(vT)} offset:{(32*t+8*u)*4+TAB_B1-TAB_CS4}"); tl[t] = self.lg.issue()
        tabs(0)
        HO = 90
        a(f"""
        v_mov_b32 v92, {s(sC0)}
        v_mov_b32 v93, {s(sC0)}
        v_bfe_u32 {v(HO)}, {v(vLane)}, 4, 1
        v_mul_u32_u24 {v(HO)}, 49152, {v(HO)}
        v_lshl_add_u32 {v(HO)}, {v(vF16)}, 2, {v(HO)}
        v_lshl_add_u32 {v(HO)}, {v(vHH)}, 8, {v(HO)}
        s_mul_i32 {s(t3)}, {s(sT32c)}, 98304
        s_mul_i32 {s(t1)}, {s(sC16)}, 3072
        s_add_u32 {s(t3)}, {s(t3)}, {s(t1)}
        s_add_u32 {s(t3)}, {s(t3)}, {WS_H}
        s_lshl_b32 {s(t0)}, {s(sT32c)}, 7
        s_lshl_b32 {s(t1)}, {s(sC16)}, 2
        s_add_u32 {s(t0)}, {s(t0)}, {s(t1)}
        s_add_u32 {s(t0)}, {s(t0)}, {FH}
        s_add_u32 {s(t1)}, {s(sLayer)}, 1
        """)
        HP = 200
        Y2, Zz = 96, 104
        R2 = self.vRstd
        for t in range(3):
            self.wait(lt=tl[t])
            if t < 2: tabs(t + 1)
            o = 32 * (t & 1)
            for h in range(2):
                Y = ACC + 16 * t + 8 * h
                for p in range(4):
                    a(f"v_pk_fma_f32 {v(TBb+o+8*h+2*p,2)}, {v(TC+o+8*h+2*p,2)}, {v(R2,2)}, {v(TBb+o+8*h+2*p,2)} op_sel:[0,1,0] op_sel_hi:[1,1,1]")
                for p in range(4):
                    a(f"v_pk_fma_f32 {v(Y+2*p,2)}, {v(Y+2*p,2)}, {v(R2,2)}, {v(TBb+o+8*h+2*p,2)} op_sel_hi:[1,0,1]")
                for p in range(4): a(f"v_pk_mul_f32 {v(Y2+2*p,2)}, {v(Y+2*p,2)}, {v(Y+2*p,2)}")
                for p in range(4): a(f"v_pk_fma_f32 {v(Y2+2*p,2)}, {v(Y2+2*p,2)}, {s(sC1,2)}, v[92:93]")
                for p in range(4): a(f"v_pk_mul_f32 {v(Zz+2*p,2)}, {v(Y2+2*p,2)}, {v(Y+2*p,2)}")
                for i in range(8): a(f"v_exp_f32 {v(Zz+i)}, {v(Zz+i)}")
                for p in range(4): a(f"v_pk_add_f32 {v(Zz+2*p,2)}, {v(Zz+2*p,2)}, 1.0 op_sel_hi:[1,0]")
                for i in range(8): a(f"v_rcp_f32 {v(Zz+i)}, {v(Zz+i)}")
                for p in range(4): a(f"v_pk_mul_f32 {v(Y+2*p,2)}, {v(Y+2*p,2)}, {v(Zz+2*p,2)}")
                for p in range(4): a(f"v_cvt_pk_bf16_f32 {v(HP+4*h+p)}, {v(Y+2*p)}, {v(Y+2*p+1)}")
                def em(fl, t=t, h=h):
                    a(f"buffer_store_dwordx4 {v(HP+4*h,4)}, {v(HO)}, {s(S_WS,4)}, {s(t3)} offen offset:{1024*t+512*h} {fl}")
                    if t == 2 and h == 1:
                        a("s_waitcnt vmcnt(0)")
                        self.flagstore(t0, s(t1), fl, 88, 89)
                self.dual(em)
        self.vm.reset()
        self.stamp("p4_pub")
        if self.stop == "p4": a("s_branch L_done")
        AB, BB = 156, 216
        self.gemm_pre(5, N5, AB)
        self.unpack_add(B2, True)
        a(f"""
        s_lshr_b32 {s(t0)}, {s(sT16)}, 1
        s_lshl_b32 {s(t0)}, {s(t0)}, 7
        s_add_u32 {s(t0)}, {s(t0)}, {FH}
        s_mul_i32 {s(sB)}, {s(sT16)}, 49152
        s_add_u32 {s(sB)}, {s(sB)}, {WS_H}
        """)
        self.poll(vF16, t0, s(t1), 136)
        self.stamp("p5_flag")
        self.gemm(48, 5, N5, self.MF16, RES, 4, AB, BB, D5, sB, set(self.P5BARS), True)
        self.stamp("p5_loop")
        a(f"s_cmp_lg_u32 {s(sLayer)}, 0\ns_cbranch_scc1 L_final")
        self.publish_x("2")
        a("s_setprio 0")
        self.stamp("p5_pub")
        a("s_branch L_p1b")
        a.label("L_final")
        P = 140
        A, B, C = 136, 137, 138
        a(f"""
        v_and_b32 {v(A)}, 15, {v(vLane)}
        v_mul_u32_u24 {v(A)}, 1280, {v(A)}
        v_lshrrev_b32 {v(B)}, 4, {v(vLane)}
        v_lshl_add_u32 {v(C)}, {v(B)}, 3, {v(A)}
        v_lshl_add_u32 {v(A)}, {v(B)}, 4, {v(A)}
        s_mul_i32 {s(t0)}, {s(sT16)}, {16*1280}
        s_mul_i32 {s(t1)}, {s(sC8)}, 160
        s_add_u32 {s(t0)}, {s(t0)}, {s(t1)}
        """)
        for i in range(10): a(f"v_cvt_pk_bf16_f32 {v(P+i)}, {v(RES+2*i)}, {v(RES+2*i+1)}")
        a(f"""
        buffer_store_dwordx4 {v(P,4)}, {v(A)}, {s(S_OUT,4)}, {s(t0)} offen
        buffer_store_dwordx4 {v(P+4,4)}, {v(A)}, {s(S_OUT,4)}, {s(t0)} offen offset:64
        buffer_store_dwordx2 {v(P+8,2)}, {v(C)}, {s(S_OUT,4)}, {s(t0)} offen offset:128
        """)
        if self.diag: a("s_waitcnt vmcnt(0)")
        self.stamp("p5_pub")
        a("s_branch L_done")

    def chain_helper(self):
        a = self.a
        TH = self.opt.get("th", 4)
        a.label("L_helper")
        a("s_setprio 0")
        self.vm.reset()
        self.wback(self.reggroups[:1])
        L = a.newlabel("Ltab")
        A, B, C = 136, 137, 138
        PP = 140
        a(f"""
        s_lshr_b32 {s(t0)}, {s(sH)}, 11
        s_or_b32 {s(t0)}, {s(t0)}, {s(sLayer)}
        s_cmp_lg_u32 {s(t0)}, 0
        s_cbranch_scc1 {L}
        s_lshr_b32 {s(t0)}, {s(sH)}, 4
        v_add_u32 {v(A)}, {s(t0)}, {v(vLane)}
        v_min_u32 {v(A)}, 95, {v(A)}                    ; row f
        v_and_b32 {v(B)}, 0x73, {v(A)}
        v_bfe_u32 {v(C)}, {v(A)}, 2, 1
        v_lshl_or_b32 {v(B)}, {v(C)}, 3, {v(B)}
        v_bfe_u32 {v(C)}, {v(A)}, 3, 1
        v_lshl_or_b32 {v(B)}, {v(C)}, 2, {v(B)}         ; feature
        s_mul_i32 {s(t0)}, {s(sC16)}, 192
        v_lshl_add_u32 {v(B)}, {v(B)}, 1, {s(t0)}
        global_load_ushort {v(C)}, {v(B)}, {s(P_B1,2)}
        v_lshlrev_b32 {v(A)}, 2, {v(A)}
        s_mul_i32 {s(t0)}, {s(sC16)}, 7680
        s_add_u32 {s(t0)}, {s(t0)}, {CS4P}
        s_add_u32 {s(t1)}, {s(t0)}, 3840
        """)
        for p in range(20):
            a(f"buffer_load_dword {v(PP+p)}, {v(A)}, {s(S_WS,4)}, {s(t0 if p < 10 else t1)} offen offset:{384*(p%10)} sc1")
        a(f"v_add_u32 {v(A)}, {TAB_CS4}, {v(A)}\ns_waitcnt vmcnt(0)")
        for p in range(1, 20): a(f"v_add_f32 {v(PP)}, {v(PP)}, {v(PP+p)}")
        a(f"""
        v_lshlrev_b32 {v(C)}, 16, {v(C)}
        ds_write_b32 {v(A)}, {v(PP)}
        ds_write_b32 {v(A)}, {v(C)} offset:{TAB_B1-TAB_CS4}
        """)
        a.label(L)
        a("s_waitcnt vmcnt(0) lgkmcnt(0)\ns_barrier")
        self.vm.reset()
        if self.stop == "p3": a("s_branch L_done")
        self.wback(self.reggroups[1:])
        self.dma_run(N5, 259, 4, sH, TH)
        a("s_waitcnt lgkmcnt(0)\ns_barrier")
        self.vm.waitall()
        a("s_barrier")
        if self.stop == "p4": a("s_branch L_done")
        self.vm.reset()
        tk = self.dma_run(259, 379, 4, sH, TH)
        nxt = 379
        bars = self.P5BARS
        for i, k in enumerate(bars):
            kn = bars[i + 1] if i + 1 < len(bars) else 48
            need = N5 + 5 * min(kn + 2, 48) - 1
            assert need < nxt, (k, need, nxt)
            if need in tk: self.wait(vt=tk[need])
            if nxt >= N1 and i == len(bars) - 1: pass
            a("s_barrier")
            lim = N5 + 5 * (k + 1) + NSLOT
            if nxt < N1:
                e = min(lim, N1)
                tk.update(self.dma_run(nxt, e, 4, sH, TH)); nxt = e
        assert nxt == N1
        a(f"s_cmp_lg_u32 {s(sLayer)}, 0\ns_cbranch_scc1 L_done")
        a("s_barrier")
        a("s_branch L_p1b")

    def p1b(self):
        a = self.a
        AB, BB = 144, 88
        ST = 168
        sB = sSoB
        a.label("L_p1b")
        self.kback()
        a("s_waitcnt lgkmcnt(0)\ns_barrier")
        if self.stop == "p5": a("s_branch L_done")
        a(f"s_mov_b32 {s(sLayer)}, 1\ns_add_u32 {s(sKV)}, {s(sKV)}, {32*KVH}")
        self.gemm_pre(2, N1, AB)
        a(f"""
        s_lshl_b32 {s(t0)}, {s(sT32)}, 7
        s_add_u32 {s(t0)}, {s(t0)}, {FX}
        s_mul_i32 {s(sB)}, {s(sT32)}, 40960
        s_add_u32 {s(sB)}, {s(sB)}, {WS_X}
        """)
        self.poll(vF16, t0, "2", ST)
        self.stamp("p1b_flag")
        tks = {}
        def ld(): tks["s"] = self.loadstats(sT32, ST)
        def us():
            self.wait(vt=tks["s"]); self.usestats(ST)
        self.gemm(40, 2, N1, self.MF32, self.ACC, 16, AB, BB, self.opt.get("d1", 6), sB, set(), True, extra={4: ld, 14: us}, zero_first=True)
        self.stamp("p1a_loop")
        a("s_branch L_epi1")

    def bench(self):
        a = self.a
        o = self.opt
        AB, BB = 48, 108
        a("s_waitcnt vmcnt(0)")
        self.vm.reset()
        self.dma_run(0, 159, 8, sW1k)
        self.vm.waitall()
        a.label("L_bench")
        a("s_barrier")
        which = o["bench"]
        if which != 1: a(f"s_cmp_ge_u32 {s(sW)}, 4\ns_cbranch_scc1 L_bh")
        if o.get("prio"):
            a(f"s_cmp_lt_u32 {s(sW)}, 4\ns_cbranch_scc1 L_bp\ns_setprio 1"); a.label("L_bp")
        nk, nt, mf, acc, accn, sT, stride, base = {
            1: (40, 2, self.MF32, self.ACC, 16, sT32, 40960, WS_X),
            3: (20, 5, self.MF16, RES, 4, sT16, OST, WS_O),
            4: (40, 3, self.MF32, 208, 16, sT32c, 40960, WS_X),
            5: (48, 5, self.MF16, RES, 4, sT16, OST, WS_H)}[which]
        self.gemm_pre(nt, 0, AB)
        a(f"s_mul_i32 {s(sSoB)}, {s(sT)}, {stride}\ns_add_u32 {s(sSoB)}, {s(sSoB)}, {base}")
        self.vm.reset()
        self.stamp("b0")
        self.gemm(nk, nt, 0, mf, acc, accn, AB, BB, o.get("depth", 8), sSoB, set(), True, zero_first=True)
        self.stamp("b1")
        if which != 1:
            a("s_branch L_be")
            a.label("L_bh")
            self.vm.reset()
            if o.get("hdma"): self.dma_run(N5, N5 + o["hdma"], 4, sH, o.get("th", 4))
            self.vm.waitall()
            self.stamp("bh")
            a.label("L_be")
        a("s_barrier")
        self.stamp("b2")
        a(f"s_add_u32 {s(sLayer)}, {s(sLayer)}, 1\ns_cmp_lt_u32 {s(sLayer)}, 2\ns_cbranch_scc1 L_bench\ns_branch L_done")

    def build(self):
        a = self.a
        self.init()
        if self.opt.get("bench"): self.bench()
        self.stamp("init")
        self.p1a()
        if self.stop == "p1a": a("s_branch L_done")
        self.epi1()
        self.stamp("epi1")
        self.attention()
        if self.stop == "att": a("s_branch L_done")
        a(f"s_cmp_ge_u32 {s(sW)}, 4\ns_cbranch_scc1 L_helper")
        self.chain_compute()
        self.chain_helper()
        self.p1b()
        self.slowpath()
        a.lines += self.ool0 + self.ool
        a.label("L_done")
        if self.diag:
            a(f"""
            s_lshl_b32 {s(t0)}, s2, 3
            s_add_u32 {s(t0)}, {s(t0)}, {s(sW)}
            s_lshl_b32 {s(t0)}, {s(t0)}, 8
            s_add_u32 {s(t0)}, {s(t0)}, {WS_END}
            s_memrealtime {s(sStampT,2)}
            s_memtime {s(sStampT+2,2)}
            s_waitcnt lgkmcnt(0)
            v_writelane_b32 {v(vDiag)}, {s(sStampT+2)}, 29
            v_writelane_b32 {v(vDiag)}, {s(sStampT)}, 31
            v_writelane_b32 {v(vDiag)}, {s(sFast)}, 30
            v_writelane_b32 {v(vDiag)}, {s(sSpin)}, 62
            v_lshlrev_b32 {v(vT)}, 2, {v(vLane)}
            v_add_u32 {v(vT)}, {s(t0)}, {v(vT)}
            global_store_dword {v(vT)}, {v(vDiag)}, {s(P_WS,2)}
            v_add_u32 {v(vT)}, 0x80000, {v(vT)}
            global_store_dword {v(vT)}, v0, {s(P_WS,2)}
            """)
        a.label("L_exit")
        a("s_endpgm")
        a.label("L_codeend")
        return a

HEADER = """; Persistent two-layer attention + MLP block, one workgroup per CU (generated by my gen.py).
; @launch grid=(256,1,1) block=(512,1,1) lds=163840
.amdgcn_target "amdgcn-amd-amdhsa--gfx950"
.text
.globl {k}
.p2align 8
.type {k},@function
{k}:
"""
FOOTER = """.section .rodata,"a"
.p2align 6
.amdhsa_kernel {k}
  .amdhsa_next_free_vgpr 256
  .amdhsa_next_free_sgpr 96
  .amdhsa_accum_offset 256
  .amdhsa_group_segment_fixed_size 0
  .amdhsa_kernarg_size 88
  .amdhsa_user_sgpr_count 2
  .amdhsa_user_sgpr_kernarg_segment_ptr 1
  .amdhsa_system_sgpr_workgroup_id_x 1
  .amdhsa_float_denorm_mode_32 3
.end_amdhsa_kernel
"""

def generate(**kw):
    g = Gen(**kw)
    a = g.build()
    pr = lint(a.lines)
    for p in pr: print("LINT:", p, file=sys.stderr)
    return HEADER.format(k=KNAME) + a.text() + FOOTER.format(k=KNAME), g

if __name__ == "__main__":
    import argparse
    ap = argparse.ArgumentParser()
    ap.add_argument("-o", default="interleave_layers__softmax_full_mha__dense_activation_gelu__prompt.s")
    ap.add_argument("--diag", action="store_true")
    ap.add_argument("--stop")
    ap.add_argument("--safe", action="store_true")
    ap.add_argument("--slow", action="store_true")
    x = ap.parse_args()
    txt, g = generate(diag=x.diag, stop=x.stop, force_safe=x.safe, force_slow=x.slow)
    open(x.o, "w").write(txt)
    print("wrote", x.o, len(txt), "bytes", len(g.a.lines), "lines")
```

```python
import sys, math, struct
from asmlib import *

KNAME = "interleave_layers__softmax_full_mha__dense_activation_gelu__prompt_kernel"

FO, FX, FH, FRP, FKV = 0, 8192, 16384, 24576, 32768
FT = 0x10000
STATS = 0x30000
CS4P = STATS + 0x20000
WS_X = CS4P + 0x20000
WS_H = WS_X + 2621440
WS_O = WS_H
OST = 49152
W3P = WS_H + 6291456
W4P = W3P + 819200
W5P = W4P + 1966080
WS_KV = W5P + 1966080
TB = 2624
KVB = 8 * TB
TG = 2688
KVH = 64 * TG
WS_END = WS_KV + 2 * 32 * KVH

NSLOT = 158
RING0 = 62
STEP = 2 * TB
W1SLOT = 70
QS = 65536
NREG0 = 136
TAB = NSLOT * 1024
TAB_CS1, TAB_CS4, TAB_B1, TAB_B2 = TAB, TAB + 256, TAB + 640, TAB + 1024
WIMG = 65536
XS = 0
CSP = WIMG + 92416
STP = TAB + 1536
CNT = TAB + 1664
RPK = 72 * 1024
def kvslot(b): return ((b + 1) % 3) * KVB
N3, N4, N5, N1 = 0, 100, 220, 460
def slot(n): return (RING0 + n) % NSLOT if n < N1 else W1SLOT + n - N1

S_WS, S_X, S_WQ, S_OUT, S_RAW = 4, 8, 12, 16, 20
sX, sJ, sW, sLayer, sFast, sSpin, sXcc = 24, 25, 26, 27, 28, 29, 30
sT16, sT32c, sC8, sC16 = 31, 32, 33, 34
sT32 = 35
sH = 36
sW1k = 37
sKV = 38
sOnes = 39
sUnit = 40
t0, t1, t2, t3, t4, t5, t6, t7 = 44, 45, 46, 47, 48, 49, 50, 51
sEx = 52
sC0, sC1 = 54, 56
sP = 58
sSoA, sSoB, sM0A, sM0B = 59, 60, 61, 62
sRdy = 63
sDone = 3
KA = 64
P_X, P_WQ, P_WO, P_W1, P_B1, P_W2, P_B2, P_OUT, P_DBG, P_WS = 64, 66, 68, 72, 74, 76, 78, 80, 82, 84
sStampT = 86
sWTB, sFT, sFKV, sRs, sRd, sRc = 90, 91, 92, 93, 94, 95
sOrd = 99
sRet, sChk = 70, 100
sXf, sXv, sXp = 96, 97, 98

vLane, vL16, vL16b, vL16c = 1, 2, 3, 4
vHH, vDiag = 5, 6
vT = 7
RES = 8
SEL1 = 28
SEL2 = 32
vOnesM = 34
vIdx = 35
vAKw = 36
vATw = 37
vAVw = 38
vAKt = 39
vAVr = 40
vOm = 41
vOt = 42
vXm = 43
vXt = 44
vSt = 45
vF32 = 46
vF16 = 47
V0 = 48

def f2u(x): return struct.unpack("<I", struct.pack("<f", x))[0]
def hexf(x): return "0x%08x" % f2u(x)

class Gen:
    def __init__(self, diag=False, stop=None, force_safe=False, force_slow=False, opt=None):
        self.a = Asm()
        self.opt = opt or {}
        self.diag, self.stop = diag, stop
        self.force_safe, self.force_slow = force_safe, force_slow
        self.vm = Ctr(self.a, "vmcnt", 63)
        self.lg = Ctr(self.a, "lgkmcnt", 15)
        self.nstamp = 0
        self.mode = None
        self.ORD = [(0x76543120, 0x76542310), (0x76543210, 0x76543210), (0x76542310, 0x76543120), (0x75316420, 0x64275310)][self.opt.get("ord", 1)]
        self.ool = []
        self.ool0 = []
        self.stampnames = []

    def stamp(self, name):
        if self.opt.get("hold"):
            a = self.a
            if name == "start": a(f"s_memrealtime {s(sStampT+2,2)}\ns_waitcnt lgkmcnt(0)")
            hn, hl = self.opt["hold"]
            if name == hn:
                L, E = a.newlabel("Lhold"), a.newlabel("Lhold")
                a(f"s_cmp_lg_u32 {s(sLayer)}, {hl}\ns_cbranch_scc1 {E}")
                if self.opt.get("holdwb"): a("s_waitcnt vmcnt(0)\ns_sleep 100\nbuffer_wbl2 sc1\ns_waitcnt vmcnt(0)")
                a.label(L)
                a(f"s_memrealtime {s(sStampT,2)}\ns_waitcnt lgkmcnt(0)\ns_sub_u32 {s(sStampT)}, {s(sStampT)}, {s(sStampT+2)}\ns_cmp_lt_u32 {s(sStampT)}, 13000\ns_cbranch_scc1 {L}")
                a.label(E)
        if not self.diag: return
        if self.opt.get("only") and name not in self.opt["only"] and name != "start": return
        a = self.a
        if name in self.stampnames: idx = self.stampnames.index(name)
        else:
            idx = len(self.stampnames); self.stampnames.append(name)
        assert idx < 29
        a(f"s_memtime {s(sStampT,2)}")
        a(f"s_memrealtime {s(sStampT+2,2)}")
        a("s_waitcnt lgkmcnt(0)")
        a(f"s_lshl_b32 {s(sStampT+1)}, {s(sLayer)}, 5")
        a(f"s_add_u32 m0, {s(sStampT+1)}, {idx}")
        a("s_nop 0")
        a(f"v_writelane_b32 {v(vDiag)}, {s(sStampT)}, m0")
        a(f"v_writelane_b32 v0, {s(sStampT+2)}, m0")
        self.lg.done = self.lg.issued

    def wait(self, vt=None, lt=None):
        parts = []
        for c, t in ((self.vm, vt), (self.lg, lt)):
            if t is None or t <= c.done: continue
            n = min(c.issued - t, c.maxv)
            parts.append(f"{c.name}({n})"); c.done = c.issued - n
        if parts: self.a("s_waitcnt " + " ".join(parts))

    def ldsaddr(self, byte):
        return [vL16, vL16b, vL16c][byte >> 16], byte & 0xffff

    def poll(self, vaddr, soff, val, tmp):
        a = self.a
        L, D = a.newlabel("Lpoll"), a.newlabel("Lpolld")
        a.label(L)
        a(f"buffer_load_dword {v(tmp)}, {v(vaddr)}, {s(S_WS,4)}, {s(soff)} offen sc1")
        a("s_waitcnt vmcnt(0)")
        a(f"v_cmp_gt_u32 vcc, {val}, {v(tmp)}")
        a(f"s_cbranch_vccz {D}")
        a(f"s_sub_u32 {s(sSpin)}, {s(sSpin)}, 1")
        a(f"s_cbranch_scc0 {L}")
        a(f"s_mov_b32 {s(sSpin)}, 0")
        a.label(D)
        self.vm.reset()

    def dual(self, emit):
        a = self.a
        if self.mode is not None:
            emit(self.mode); return
        S, E = a.newlabel("Lsafe"), a.newlabel("Lsend")
        a(f"s_cmp_eq_u32 {s(sFast)}, 0")
        a(f"s_cbranch_scc1 {S}")
        st = (self.vm.issued, self.vm.done, self.lg.issued, self.lg.done)
        emit("")
        a.label(E)
        main = a.lines
        a.lines = self.ool
        a.label(S)
        self.vm.issued, self.vm.done, self.lg.issued, self.lg.done = st
        emit("sc1")
        a(f"s_branch {E}")
        a.lines = main

    def flagstore(self, soff, val, fl, va, vb):
        a = self.a
        a(f"v_mov_b32 {v(va)}, 0")
        a(f"v_mov_b32 {v(vb)}, {val}")
        a(f"s_mov_b64 exec, 1")
        a(f"buffer_store_dword {v(vb)}, {v(va)}, {s(S_WS,4)}, {s(soff)} offen {fl}")
        a(f"s_mov_b64 exec, -1")
        self.vm.issue()

    def wsrc(self, n):
        if n < N4: return 0, (n - N3) * 1024
        if n < N5: return 1, (n - N4) * 1024
        if n < N1: return 2, (n - N5) * 1024
        return 3, (n - N1) * 1024

    def dma_run(self, n0, n1, nw, sWave, throttle=None, flags=''):
        a = self.a
        tick = {}
        n = n0
        while n < n1:
            ph, _ = self.wsrc(n)
            e = min(n1, [N4, N5, N1][ph], n + (NSLOT - slot(n)))
            base = self.wbase[ph]
            k = n
            while k < e:
                cnt = min(nw, e - k)
                wv = sWave
                if cnt < nw:
                    a(f"s_min_u32 {s(t7)}, {s(sWave)}, {(cnt-1)*1024}")
                    wv = t7
                a(f"s_add_u32 m0, {s(wv)}, {slot(k)*1024}")
                a(f"s_add_u32 {s(t6)}, {s(wv)}, {s(base)}")
                off = self.wsrc(k)[1]
                a(f"s_add_u32 {s(t6)}, {s(t6)}, {off}")
                a(f"buffer_load_dwordx4 {v(vL16)}, {s(S_WS,4)}, {s(t6)} offen sc1 {flags} lds")
                tk = self.vm.issue()
                for q in range(k, k + cnt): tick[q] = tk
                if throttle is not None and self.vm.issued - self.vm.done > throttle:
                    self.wait(vt=self.vm.issued - throttle)
                k += cnt
            n = e
        return tick

    def init(self):
        a = self.a
        a(f"""
        s_cmp_ge_u32 s2, 256
        s_cbranch_scc1 L_exit
        s_load_dwordx16 {s(KA,16)}, s[0:1], 0
        s_load_dwordx4 {s(KA+16,4)}, s[0:1], 64
        s_load_dwordx2 {s(KA+20,2)}, s[0:1], 80
        v_lshrrev_b32 {v(vT)}, 6, v0
        v_and_b32 {v(vLane)}, 63, v0
        v_readfirstlane_b32 {s(sW)}, {v(vT)}
        s_and_b32 {s(sX)}, s2, 7
        s_lshr_b32 {s(sJ)}, s2, 3
        s_getreg_b32 {s(sXcc)}, hwreg(HW_REG_XCC_ID)
        s_and_b32 {s(sXcc)}, {s(sXcc)}, 7
        s_mov_b32 {s(sLayer)}, 0
        s_mov_b32 {s(sFast)}, 0
        s_mov_b32 {s(sXv)}, 0
        s_mov_b32 {s(sSpin)}, 400000
        s_mov_b32 {s(sOnes)}, 0x3f803f80
        v_lshlrev_b32 {v(vL16)}, 4, {v(vLane)}
        v_lshrrev_b32 {v(vHH)}, 5, {v(vLane)}
        v_mov_b32 {v(vDiag)}, 0
        s_lshl_b32 {s(sW1k)}, {s(sW)}, 10
        s_and_b32 {s(sH)}, {s(sW1k)}, 3072
        s_lshl_b32 {s(sT32)}, {s(sX)}, 3
        s_add_u32 {s(sT32)}, {s(sT32)}, {s(sW)}
        """)
        self.stamp("start")
        if self.diag:
            a(f"s_memrealtime {s(sStampT,2)}\ns_waitcnt lgkmcnt(0)\nv_writelane_b32 {v(vDiag)}, {s(sStampT)}, 63")
        self.vWd = 120; self.vXe = 121; self.vXo = 122
        self.vXr = 124
        self.vWr = 128
        A, B, C = V0, V0 + 1, V0 + 2
        NL = self.opt.get("nl", 13)
        NC = -(-(19200 - 256 * NL) // 2048)
        a(f"""
        s_lshl_b32 {s(t2)}, {s(sJ)}, 3
        s_add_u32 {s(t2)}, {s(t2)}, {s(sW)}
        s_lshl_b32 {s(t1)}, {s(sX)}, 8
        s_add_u32 {s(t1)}, {s(t2)}, {s(t1)}
        s_mul_i32 {s(t0)}, {s(t1)}, 1280
        s_mul_i32 {s(t2)}, {s(t2)}, {NL*128}
        s_mul_i32 {s(t1)}, {s(t1)}, {NC*128}
        s_add_u32 {s(t1)}, {s(t1)}, {NL*128*255}
        v_mul_u32_u24 {v(B)}, 20, {v(vLane)}
        v_lshlrev_b32 {v(A)}, 7, {v(vLane)}
        v_add_u32 {v(C)}, {s(t1)}, {v(A)}
        s_bfm_b64 exec, {NL}, 0
        v_add_u32 {v(C)}, {s(t2)}, {v(A)}
        s_mov_b64 exec, -1
        s_mov_b32 {s(S_X+2)}, 2621440
        s_mov_b32 {s(S_X+3)}, 0x20000
        s_mov_b32 {s(S_WQ+2)}, 2457600
        s_mov_b32 {s(S_WQ+3)}, 0x20000
        s_mov_b32 {s(S_WS+2)}, {WS_END}
        s_mov_b32 {s(S_WS+3)}, 0x20000
        s_waitcnt lgkmcnt(0)
        s_mov_b64 {s(S_X,2)}, {s(P_X,2)}
        s_mov_b64 {s(S_WQ,2)}, {s(P_WQ,2)}
        buffer_load_dwordx4 {v(RES+12,4)}, {v(B)}, {s(S_X,4)}, {s(t0)} offen
        s_bfm_b64 exec, {NL+NC}, 0
        buffer_load_dword {v(RES)}, {v(C)}, {s(S_WQ,4)}, 0 offen
        s_mov_b64 exec, -1
        buffer_load_dword {v(RES+16)}, {v(B)}, {s(S_X,4)}, {s(t0)} offen offset:16
        s_mov_b64 {s(S_WS,2)}, {s(P_WS,2)}
        """)
        self.stamp("i_row")
        L5, L7, LE = a.newlabel("Li"), a.newlabel("Li"), a.newlabel("Li")
        a(f"""
        s_cmp_ge_u32 {s(sW)}, 6
        s_cbranch_scc1 {L5}
        """)
        a.label(LE)
        def f():
            a.label(L5)
            a(f"""
            s_cmp_eq_u32 {s(sW)}, 7
            s_cbranch_scc1 {L7}
            s_cmp_ge_u32 s2, 24
            s_cbranch_scc1 {LE}
            v_mov_b32 {v(V0+4)}, 0
            v_mov_b32 {v(V0+5)}, 0
            v_mov_b32 {v(V0+6)}, 0
            v_mov_b32 {v(V0+7)}, 0
            s_lshl_b32 {s(t0)}, s2, 13
            """)
            assert STATS == 24 * 8192
            for i in range(8):
                a(f"buffer_store_dwordx4 {v(V0+4,4)}, {v(vL16)}, {s(S_WS,4)}, {s(t0)} offen offset:{1024*(i&3)} sc1")
                if i & 3 == 3: a(f"s_add_u32 {s(t0)}, {s(t0)}, 4096")
            a(f"s_branch {LE}")
            a.label(L7)
            a(f"""
            s_getpc_b64 {s(t2,2)}
            L_pc:
            s_lshl_b32 {s(t0)}, {s(sJ)}, 11
            v_add_u32 {v(B)}, {s(t0)}, {v(A)}
            v_min_u32 {v(B)}, (L_hotend-L_pc-4), {v(B)}
            s_mov_b64 exec, 0xffff
            global_load_dword {v(RES+1)}, {v(B)}, {s(t2,2)}
            s_mov_b64 exec, -1
            s_branch {LE}
            """)
        self.front = self.capture(f)
        a(f"""
        v_mul_u32_u24 {v(A)}, 57, {v(vLane)}
        v_lshrrev_b32 {v(A)}, 9, {v(A)}                 ; row = l/9
        v_mul_u32_u24 {v(B)}, 9, {v(A)}
        v_sub_u32 {v(B)}, {v(vLane)}, {v(B)}            ; q
        v_mul_u32_u24 {v(C)}, 11, {v(B)}
        v_lshrrev_b32 {v(C)}, 5, {v(C)}                 ; seg
        v_mul_u32_u24 {v(A)}, 3840, {v(A)}
        v_lshl_add_u32 {v(A)}, {v(B)}, 4, {v(A)}        ; + q*16
        v_mul_u32_u24 {v(C)}, {1280-48}, {v(C)}
        v_add_u32 {v(self.vWd)}, {v(A)}, {v(C)}
        v_lshrrev_b32 {v(A)}, 3, {v(vLane)}             ; r
        v_lshrrev_b32 {v(B)}, 4, {v(vLane)}             ; r>>1
        v_and_b32 {v(C)}, 7, {v(vLane)}
        v_xor_b32 {v(B)}, {v(B)}, {v(C)}
        v_mul_u32_u24 {v(A)}, 1280, {v(A)}
        v_lshl_add_u32 {v(self.vXe)}, {v(B)}, 4, {v(A)}
        v_xor_b32 {v(self.vXo)}, 64, {v(self.vXe)}
        """)
        a(f"""
        s_mul_i32 {s(t0)}, {s(sJ)}, 40
        s_and_b32 {s(t0)}, {s(t0)}, 0xfffffff0
        s_mul_i32 {s(sSoA)}, {s(sW)}, {7*3840}
        s_add_u32 {s(sSoA)}, {s(sSoA)}, {s(t0)}          ; W soffset
        s_mul_i32 {s(sM0A)}, {s(sW)}, 1008
        s_add_u32 {s(sM0A)}, {s(sM0A)}, {WIMG}           ; W lds
        s_mul_i32 {s(sSoB)}, {s(sT32)}, {32*1280}        ; x soffset
        s_lshl_b32 {s(sM0B)}, {s(sW)}, 13                ; x lds
        """)
        self.xtk, self.wtk = {}, []
        LEAD = self.opt.get("lead", 2)
        self.worder = []
        for c in range(4):
            o = sorted(range(12), key=lambda r: r - (LEAD + 0.5 if (r & 3) == c and r >= 2 + LEAD else 0))
            self.worder.append(o)
        tabs = [sum(r << (4 * i) for i, r in enumerate(o)) for o in self.worder]
        a(f"s_and_b32 {s(t0)}, {s(sJ)}, 3")
        a(f"s_mov_b32 {s(sEx)}, {hex(tabs[0] & 0xffffffff)}\ns_mov_b32 {s(sEx+1)}, {hex(tabs[0] >> 32)}")
        for c in range(1, 4):
            a(f"s_cmp_eq_u32 {s(t0)}, {c}\ns_cmov_b32 {s(sEx)}, {hex(tabs[c] & 0xffffffff)}\ns_cmov_b32 {s(sEx+1)}, {hex(tabs[c] >> 32)}")
        self.vm.reset()
        if self.opt.get("zf") == 1: self.vm.issued += self.zfill(V0 + 16, 8, sW1k)
        for i in range(self.opt.get("early", 0)): self.wround()
        a(f"""
        s_mov_b32 {s(S_OUT)}, {s(P_OUT)}
        s_mov_b32 {s(S_OUT+1)}, {s(P_OUT+1)}
        s_mov_b32 {s(S_OUT+2)}, 2621440
        s_mov_b32 {s(S_OUT+3)}, 0x20000
        s_and_b32 {s(sC8)}, {s(sJ)}, 7
        s_and_b32 {s(sC16)}, {s(sJ)}, 15
        s_and_b32 {s(t0)}, {s(sW)}, 3
        s_lshr_b32 {s(t1)}, {s(sJ)}, 3
        s_lshl_b32 {s(t1)}, {s(t1)}, 2
        s_lshl_b32 {s(sT16)}, {s(sX)}, 4
        s_add_u32 {s(sT16)}, {s(sT16)}, {s(t1)}
        s_add_u32 {s(sT16)}, {s(sT16)}, {s(t0)}
        s_lshr_b32 {s(t1)}, {s(sJ)}, 4
        s_lshl_b32 {s(t1)}, {s(t1)}, 2
        s_lshl_b32 {s(sT32c)}, {s(sX)}, 3
        s_add_u32 {s(sT32c)}, {s(sT32c)}, {s(t1)}
        s_add_u32 {s(sT32c)}, {s(sT32c)}, {s(t0)}
        s_mul_i32 {s(sKV)}, {s(sJ)}, {KVH}
        s_add_u32 {s(sKV)}, {s(sKV)}, {WS_KV}
        v_add_u32 {v(vL16b)}, 0x10000, {v(vL16)}
        v_add_u32 {v(vL16c)}, 0x20000, {v(vL16)}
        s_mul_i32 {s(sWTB)}, {s(sW)}, {TB}
        s_lshl_b32 {s(sFKV)}, {s(sJ)}, 10
        s_add_u32 {s(sFKV)}, {s(sFKV)}, {FKV}
        s_lshl_b32 {s(sFT)}, {s(sJ)}, 12
        s_lshr_b32 {s(t0)}, {s(sH)}, 3
        s_add_u32 {s(sFT)}, {s(sFT)}, {s(t0)}
        s_add_u32 {s(sFT)}, {s(sFT)}, {FT}
        """)
        self.wbase = [41, 42, 43]
        a(f"""
        s_mul_i32 s41, {s(sC8)}, 102400
        s_add_u32 s41, s41, {W3P}
        s_mul_i32 s42, {s(sC16)}, 122880
        s_add_u32 s42, s42, {W4P}
        s_mul_i32 s43, {s(sC8)}, 245760
        s_add_u32 s43, s43, {W5P}
        """)
        c0 = -2.0 * math.log2(math.e) * math.sqrt(2.0 / math.pi)
        a(f"""
        s_mov_b32 {s(sC0)}, {hexf(c0)}
        s_mov_b32 {s(sC0+1)}, {hexf(c0)}
        s_mov_b32 {s(sC1)}, {hexf(c0*0.044715)}
        s_mov_b32 {s(sC1+1)}, {hexf(c0*0.044715)}
        """)
        N, Dd, E, Fq = V0 + 8, V0 + 9, V0 + 10, V0 + 11
        a(f"""
        v_and_b32 {v(N)}, 31, {v(vLane)}                ; n / tau
        v_lshlrev_b32 {v(vF32)}, 2, {v(N)}
        v_and_b32 {v(vF16)}, 60, {v(vF32)}
        v_bfe_u32 {v(Dd)}, {v(vLane)}, 1, 3
        v_xor_b32 {v(Dd)}, {v(Dd)}, {v(vHH)}
        v_lshlrev_b32 {v(Dd)}, 4, {v(Dd)}
        v_lshl_add_u32 {v(Dd)}, {v(N)}, 7, {v(Dd)}
        s_lshl_b32 {s(t0)}, {s(sW)}, 13
        v_add_u32 {v(self.vXr)}, {s(t0)}, {v(Dd)}
        """)
        for i in range(1, 4):
            a(f"v_xor_b32 {v(self.vXr+i)}, {32*i}, {v(self.vXr)}")
        tb = [[6, 8, 7, 9, 12, 14, 13, 15], [10, 16, 4, 4, 0, 2, 1, 3]]
        a(f"""
        v_bfe_u32 {v(Dd)}, {v(vLane)}, 2, 2             ; r
        v_lshl_add_u32 {v(Dd)}, {v(vHH)}, 3, {v(Dd)}    ; 8g + r
        v_mul_u32_u24 {v(Dd)}, 144, {v(Dd)}
        s_and_b32 {s(t0)}, {s(sJ)}, 1
        s_lshl_b32 {s(t0)}, {s(t0)}, 3
        s_add_u32 {s(t0)}, {s(t0)}, {WIMG}
        v_add_u32 {v(Dd)}, {s(t0)}, {v(Dd)}
        v_and_b32 {v(E)}, 3, {v(vLane)}
        v_lshlrev_b32 {v(E)}, 3, {v(E)}                 ; 8*c
        v_and_b32 {v(Fq)}, 16, {v(vLane)}
        v_cmp_ne_u32 vcc, 0, {v(Fq)}
        """)
        for t in range(2):
            lo = sum((tb[t][i] * 8) << (8 * i) for i in range(4))
            hi = sum((tb[t][4 + i] * 8) << (8 * i) for i in range(4))
            a(f"""
            v_mov_b32 {v(Fq)}, {hex(lo)}
            v_mov_b32 {v(Fq+1)}, {hex(hi)}
            v_cndmask_b32 {v(Fq)}, {v(Fq)}, {v(Fq+1)}, vcc
            v_bfe_u32 {v(Fq)}, {v(Fq)}, {v(E)}, 8
            v_add_u32 {v(self.vWr+t)}, {v(Dd)}, {v(Fq)}
            """)

    def consts(self):
        a = self.a
        N, Dd, E, Fq = 140, 141, 142, 143
        a(f"""
        v_mov_b32 {v(vIdx)}, 0xdddddddd
        v_and_b32 {v(N)}, 31, {v(vLane)}
        v_and_b32 {v(Dd)}, 1, {v(vLane)}
        v_lshlrev_b32 {v(Dd)}, 4, {v(Dd)}
        v_mov_b32 {v(E)}, 0x3f80
        v_lshlrev_b32 {v(Dd)}, {v(Dd)}, {v(E)}
        v_bfe_u32 {v(E)}, {v(vLane)}, 2, 1
        v_xor_b32 {v(E)}, {v(E)}, {v(vHH)}              ; 0 when ((n>>2)&1)==g
        v_lshlrev_b32 {v(E)}, 4, {v(E)}
        v_lshrrev_b32 {v(Fq)}, 3, {v(N)}
        v_lshl_or_b32 {v(E)}, {v(Fq)}, 1, {v(E)}
        v_bfe_u32 {v(Fq)}, {v(vLane)}, 1, 1
        v_or_b32 {v(E)}, {v(E)}, {v(Fq)}                ; key
        """)
        for r in range(4):
            a(f"v_cmp_eq_u32 vcc, {r}, {v(E)}\ns_nop 1\nv_cndmask_b32 {v(SEL1+r)}, 0, {v(Dd)}, vcc")
        a(f"v_lshrrev_b32 {v(E)}, 1, {v(vLane)}")
        for r in range(2):
            a(f"v_cmp_eq_u32 vcc, {24+r}, {v(E)}\ns_nop 1\nv_cndmask_b32 {v(SEL2+r)}, 0, {v(Dd)}, vcc")
        a(f"""
        v_mov_b32 {v(E)}, {s(sOnes)}
        v_cmp_eq_u32 vcc, 20, {v(N)}
        s_nop 1
        v_cndmask_b32 {v(vOnesM)}, 0, {v(E)}, vcc
        v_and_b32 {v(Dd)}, 0x13, {v(N)}
        v_bfe_u32 {v(E)}, {v(N)}, 2, 1
        v_lshl_or_b32 {v(Dd)}, {v(E)}, 3, {v(Dd)}
        v_bfe_u32 {v(E)}, {v(N)}, 3, 1
        v_lshl_or_b32 {v(Dd)}, {v(E)}, 2, {v(Dd)}
        s_mul_i32 {s(t0)}, {s(sW)}, {TB}
        v_lshlrev_b32 {v(E)}, 9, {v(vHH)}
        v_lshl_add_u32 {v(E)}, {v(Dd)}, 4, {v(E)}
        v_add_u32 {v(vAKw)}, {s(t0)}, {v(E)}
        v_lshlrev_b32 {v(E)}, 3, {v(Dd)}
        v_add_u32 {v(vATw)}, {s(t0)}, {v(E)}
        v_min_u32 {v(Dd)}, 20, {v(N)}
        v_mul_u32_u24 {v(E)}, 336, {v(vHH)}
        v_lshl_add_u32 {v(vAVr)}, {v(Dd)}, 4, {v(E)}
        v_add_u32 {v(vAVw)}, {s(t0)}, {v(vAVr)}
        v_mul_u32_u24 {v(E)}, {TB}, {v(vHH)}
        v_lshl_add_u32 {v(vAKt)}, {v(N)}, 3, {v(E)}
        ; o offsets
        v_lshrrev_b32 {v(Dd)}, 4, {v(N)}
        v_mul_u32_u24 {v(Dd)}, {OST}, {v(Dd)}
        v_lshl_add_u32 {v(Dd)}, {v(vF16)}, 2, {v(Dd)}
        s_mul_i32 {s(t0)}, {s(sT32)}, {2*OST}
        s_add_u32 {s(t0)}, {s(t0)}, {WS_O}
        s_lshl_b32 {s(t1)}, {s(sJ)}, 9
        s_add_u32 {s(t1)}, {s(t1)}, {s(t0)}
        v_lshl_add_u32 {v(E)}, {v(vHH)}, 8, {v(Dd)}
        v_add_u32 {v(vOm)}, {s(t1)}, {v(E)}
        s_lshr_b32 {s(t1)}, {s(sJ)}, 1
        s_lshl_b32 {s(t1)}, {s(t1)}, 8
        s_and_b32 {s(t2)}, {s(sJ)}, 1
        s_lshl_b32 {s(t2)}, {s(t2)}, 3
        s_add_u32 {s(t1)}, {s(t1)}, {s(t2)}
        s_add_u32 {s(t1)}, {s(t1)}, {s(t0)}
        s_add_u32 {s(t1)}, {s(t1)}, 16384
        v_add_u32 {v(vOt)}, {s(t1)}, {v(Dd)}
        s_lshr_b32 {s(t0)}, {s(sT16)}, 1
        s_and_b32 {s(t1)}, {s(sT16)}, 1
        s_mul_i32 {s(t2)}, {s(t0)}, 40960
        s_mul_i32 {s(t3)}, {s(sC8)}, 5120
        s_add_u32 {s(t2)}, {s(t2)}, {s(t3)}
        s_lshl_b32 {s(t3)}, {s(t1)}, 8
        s_add_u32 {s(t2)}, {s(t2)}, {s(t3)}
        s_add_u32 {s(t2)}, {s(t2)}, {WS_X}
        v_lshrrev_b32 {v(Dd)}, 4, {v(vLane)}            ; q
        v_lshlrev_b32 {v(E)}, 9, {v(Dd)}
        v_lshl_add_u32 {v(E)}, {v(vF16)}, 2, {v(E)}
        v_add_u32 {v(vXm)}, {s(t2)}, {v(E)}
        v_lshlrev_b32 {v(E)}, 9, {v(vHH)}
        v_lshl_add_u32 {v(E)}, {v(vF16)}, 2, {v(E)}
        v_and_b32 {v(Fq)}, 1, {v(Dd)}
        v_lshl_add_u32 {v(E)}, {v(Fq)}, 3, {v(E)}
        s_add_u32 {s(t2)}, {s(t2)}, 4096
        v_add_u32 {v(vXt)}, {s(t2)}, {v(E)}
        s_lshl_b32 {s(t2)}, {s(t0)}, 11
        s_lshl_b32 {s(t3)}, {s(t1)}, 8
        s_add_u32 {s(t2)}, {s(t2)}, {s(t3)}
        s_lshr_b32 {s(t3)}, {s(sC8)}, 1
        s_lshl_b32 {s(t3)}, {s(t3)}, 9
        s_add_u32 {s(t2)}, {s(t2)}, {s(t3)}
        s_and_b32 {s(t3)}, {s(sC8)}, 1
        s_lshl_b32 {s(t3)}, {s(t3)}, 3
        s_add_u32 {s(t2)}, {s(t2)}, {s(t3)}
        s_add_u32 {s(t2)}, {s(t2)}, {STATS}
        v_lshlrev_b32 {v(E)}, 2, {v(vF16)}
        v_lshl_add_u32 {v(E)}, {v(vHH)}, 2, {v(E)}
        v_add_u32 {v(vSt)}, {s(t2)}, {v(E)}
        """)

    def zfill(self, Z, nw, sWv):
        a = self.a
        for i in range(4): a(f"v_mov_b32 {v(Z+i)}, 0")
        tot = (2621440 + 6291456) // 1024 // 256
        per = -(-tot // nw)
        a(f"""
        s_mul_i32 {s(t0)}, {s(sWv)}, {per}
        s_min_u32 {s(t0)}, {s(t0)}, {(tot - per) * 1024}
        s_mul_i32 {s(t1)}, s2, {tot * 1024}
        s_add_u32 {s(t0)}, {s(t0)}, {s(t1)}
        s_add_u32 {s(t0)}, {s(t0)}, {WS_X}
        """)
        for i in range(per):
            if i and i % 4 == 0: a(f"s_add_u32 {s(t0)}, {s(t0)}, 4096")
            a(f"buffer_store_dwordx4 {v(Z,4)}, {v(vL16)}, {s(S_WS,4)}, {s(t0)} offen offset:{1024*(i&3)} sc1")
        return per

    def wround(self):
        a = self.a
        i = len(self.wtk)
        a(f"""
        s_bfe_u32 {s(t6)}, {s(sEx + i // 8)}, {hex(0x40000 + 4 * (i % 8))}
        s_mul_i32 {s(t7)}, {s(t6)}, 8064
        s_add_u32 m0, {s(t7)}, {s(sM0A)}
        s_mul_i32 {s(t7)}, {s(t6)}, 215040
        s_add_u32 {s(t7)}, {s(t7)}, {s(sSoA)}
        buffer_load_dwordx4 {v(self.vWd)}, {s(S_WQ,4)}, {s(t7)} offen lds
        """)
        self.wtk.append(self.vm.issue())

    def wpos(self, r):
        return max(max(o.index(q) for q in range(r + 1)) for o in self.worder)

    def xdma(self, p, i):
        a = self.a
        a(f"s_add_u32 m0, {s(sM0B)}, {(p&1)*4096 + i*1024}")
        a(f"s_add_u32 {s(t7)}, {s(sSoB)}, {i*10240 + p*128}")
        a(f"buffer_load_dwordx4 {v(self.vXo if i & 1 else self.vXe)}, {s(S_X,4)}, {s(t7)} offen lds")
        self.xtk[p] = self.vm.issue()

    ACC = 224
    vRstd, vNm = 132, 133
    vS, vQ = 134, 135

    def p1a(self):
        a = self.a
        ACC = self.ACC
        XF = [144, 160]
        WF = 176
        cs = 136
        vK = self.vWr + 2
        TM = RES + 2
        PD, SA_ = RES + 8, 123
        ROW = RES + 12
        vS, vQ = self.vS, self.vQ
        xl, wl, kl, tk = {}, {}, {}, {}
        wbase = [0]
        def xreads(p):
            for i in range(4):
                a(f"ds_read_b128 {v(XF[p&1]+4*i,4)}, {v(self.vXr+i)} offset:{4096*(p&1)}"); xl[p] = self.lg.issue()
        def trreads(dst, ar, k):
            for t in range(2):
                for ab in range(2):
                    off = (16 * (k - wbase[0]) + 4 * ab) * 144
                    assert 0 <= off < 65536
                    a(f"ds_read_b64_tr_b16 {v(dst+4*t+2*ab,2)}, {v(ar+t)} offset:{off}")
                    t_ = self.lg.issue()
            return t_
        def wneed(p): return self.wpos(-(-64 * (p + 1) // 56) - 1)
        for r in (vS, vQ, cs, cs + 1): a(f"v_mov_b32 {v(r)}, 0")
        a(f"s_mul_i32 {s(t0)}, {s(sW)}, {16*144}\nv_and_b32 {v(vT)}, 28, {v(vF32)}\nv_lshlrev_b32 {v(TM+4)}, 2, {v(vLane)}\nv_min_u32 {v(TM+7)}, 92, {v(vF32)}")
        if self.opt.get("fakew"):
            for t in range(2): a(f"v_lshlrev_b32 {v(self.vWr+t)}, 3, {v(vLane)}\nv_add_u32 {v(self.vWr+t)}, {WIMG}, {v(self.vWr+t)}")
        for t in range(2): a(f"v_add_u32 {v(vK+t)}, {s(t0)}, {v(self.vWr+t)}")
        a(f"s_waitcnt vmcnt({self.vm.issued})")
        self.stamp("i_rowd")
        while len(self.wtk) < 2: self.wround()
        for i in range(4): self.xdma(0, i)
        for r in range(5):
            a(f"v_dot2c_f32_bf16 {v(vS)}, {s(sOnes)}, {v(ROW+r)}")
            a(f"v_dot2c_f32_bf16 {v(vQ)}, {v(ROW+r)}, {v(ROW+r)}")
        L = a.newlabel("Larr")
        a(f"""
        s_xor_b32 {s(t0)}, {s(sW)}, 6
        s_lshl_b32 {s(t0)}, {s(t0)}, 8
        s_or_b32 {s(t0)}, {s(t0)}, s2
        s_cmp_ge_u32 {s(t0)}, 24
        s_cbranch_scc1 {L}
        s_lshl_b32 {s(t0)}, s2, 2
        v_mov_b32 {v(TM+2)}, {s(t0)}
        v_mov_b32 {v(TM+3)}, 1
        s_mov_b64 exec, 1
        global_store_dword {v(TM+2)}, {v(TM+3)}, {s(P_DBG,2)} offset:64 sc1
        s_mov_b64 exec, -1
        """)
        a.label(L)
        for i in range(4): self.xdma(1, i)
        while len(self.wtk) <= wneed(1): self.wround()
        for ror in (8, 4, 2, 1):
            a(f"v_add_f32_dpp {v(vS)}, {v(vS)}, {v(vS)} row_ror:{ror} row_mask:0xf bank_mask:0xf")
            a(f"v_add_f32_dpp {v(vQ)}, {v(vQ)}, {v(vQ)} row_ror:{ror} row_mask:0xf bank_mask:0xf")
            a("s_nop 0")
        a(f"""
        v_mov_b32 {v(TM)}, {v(vS)}
        v_mov_b32 {v(TM+1)}, {v(vQ)}
        s_nop 1
        v_permlane16_swap_b32 {v(vS)}, {v(TM)}
        v_permlane16_swap_b32 {v(vQ)}, {v(TM+1)}
        v_add_f32 {v(vS)}, {v(vS)}, {v(TM)}
        v_add_f32 {v(vQ)}, {v(vQ)}, {v(TM+1)}
        """)
        self.finstats(vS, vQ, TM)
        a(f"""
        s_lshl_b32 {s(t0)}, {s(sW)}, 3
        s_add_u32 {s(t0)}, {s(t0)}, {STP}
        v_or_b32 {v(self.vRstd)}, 1, {v(self.vRstd)}
        v_mov_b32 {v(TM)}, {s(t0)}
        ds_write_b64 {v(TM)}, {v(self.vRstd,2)}
        v_add_u32 {v(TM)}, {CNT}, {v(vF16)}
        ds_write_b32 {v(TM)}, {v(cs)}
        """)
        self.lg.reset()
        self.wait(vt=max(self.xtk[0], self.wtk[wneed(0)]))
        a("s_barrier")
        xreads(0)
        for k in range(2): wl[k] = trreads(WF + 8 * k, self.vWr, k)
        self.stamp("p1a_first")
        post = {}
        def at(k, f): post.setdefault(k, []).append(f)
        def dbgload():
            L = a.newlabel("Ld")
            a(f"s_cmp_lg_u32 {s(sW)}, 5\ns_cbranch_scc1 {L}\nglobal_load_dword {v(PD)}, {v(TM+7)}, {s(P_DBG,2)} offset:64 sc1")
            a.label(L)
            tk["dbg"] = self.vm.issued + 1
        def publish():
            assert self.vm.done >= tk["dbg"]
            LA, LB, L3, L4 = (a.newlabel("Lc") for _ in range(4))
            a(f"s_cmp_eq_u32 {s(sW)}, 5\ns_cbranch_scc1 {L3}")
            a.label(L4)
            def f():
                a.label(L3)
                a(f"v_add_u32 {v(TM+2)}, {STP}, {v(vF16)}\nds_read_b32 {v(TM+3)}, {v(TM+2)}")
                a(f"v_cmp_ne_u32 vcc, 1, {v(PD)}\ns_cbranch_vccz {LB}")
                a.label(LA)
                a(f"""
                global_load_dword {v(PD)}, {v(TM+7)}, {s(P_DBG,2)} offset:64 sc1
                s_waitcnt vmcnt(0)
                v_cmp_ne_u32 vcc, 1, {v(PD)}
                s_cbranch_vccz {LB}
                s_sub_u32 {s(sSpin)}, {s(sSpin)}, 1
                s_cbranch_scc0 {LA}
                s_mov_b32 {s(sSpin)}, 0
                """)
                a.label(LB)
                a(f"""
                s_lshl_b32 {s(t0)}, {s(sX)}, 7
                s_add_u32 {s(t0)}, {s(t0)}, {s(sFKV)}
                s_waitcnt lgkmcnt(0)
                s_mov_b64 exec, 0xffff
                buffer_store_dword {v(TM+3)}, {v(vF16)}, {s(S_WS,4)}, {s(t0)} offen offset:64 sc1
                s_mov_b64 exec, -1
                s_branch {L4}
                """)
            self.outofline(f)
        at(5, dbgload); at(10, publish)
        def s0():
            a(f"""
            s_lshl_b32 {s(t4)}, {s(sW)}, 12
            s_lshl_b32 {s(t1)}, {s(sX)}, 7
            s_add_u32 {s(t4)}, {s(t4)}, {s(t1)}
            s_add_u32 {s(t4)}, {s(t4)}, {FKV + 64}
            v_bfe_u32 {v(SA_)}, {v(vLane)}, 3, 2
            v_lshlrev_b32 {v(SA_)}, 10, {v(SA_)}
            v_lshl_add_u32 {v(SA_)}, {v(vT)}, 1, {v(SA_)}
            buffer_load_dwordx2 {v(self.vRstd,2)}, {v(SA_)}, {s(S_WS,4)}, {s(t4)} offen sc1
            """)
            tk["s"] = self.vm.issue()
        def s1():
            self.wait(vt=tk["s"])
            L, Dn = a.newlabel("Lst"), a.newlabel("Lst")
            a(f"v_cmp_eq_u32 vcc, 0, {v(self.vRstd)}\ns_cbranch_vccnz {L}")
            a.label(Dn)
            def f():
                a.label(L)
                a(f"""
                buffer_load_dwordx2 {v(self.vRstd,2)}, {v(SA_)}, {s(S_WS,4)}, {s(t4)} offen sc1
                s_waitcnt vmcnt(0)
                v_cmp_eq_u32 vcc, 0, {v(self.vRstd)}
                s_cbranch_vccz {Dn}
                s_sub_u32 {s(sSpin)}, {s(sSpin)}, 1
                s_cbranch_scc0 {L}
                s_mov_b32 {s(sSpin)}, 0
                s_branch {Dn}
                """)
            self.outofline(f)
        at(25, s0); at(30, s1)
        KR = {0: 4, 1: 12, 2: 20, 3: 24, 4: 27}
        WLAST = 6
        for i, k in KR.items():
            def kr(i=i): kl[i] = trreads(self.KEEP + 8 * i, vK, 8 * i)
            def kd(i=i):
                self.wait(lt=kl[i])
                for r in range(4):
                    for t in range(2): a(f"v_dot2c_f32_bf16 {v(cs+t)}, {s(sOnes)}, {v(self.KEEP+8*i+4*t+r)}")
            at(k, kr); at(k + 2, kd)
        CA, CP = 138, 208
        def c1():
            a(f"""
            v_permlane32_swap_b32 {v(cs)}, {v(cs+1)}
            s_lshl_b32 {s(t0)}, {s(sW)}, 8
            s_add_u32 {s(t0)}, {s(t0)}, {CSP}
            v_add_f32 {v(cs)}, {v(cs)}, {v(cs+1)}
            v_add_u32 {v(CA+1)}, {s(t0)}, {v(TM+4)}
            ds_write_b32 {v(CA+1)}, {v(cs)}
            v_add_u32 {v(CA+1)}, {CSP}, {v(TM+4)}
            v_add_u32 {v(CA)}, {TAB_CS1}, {v(TM+4)}
            """)
            self.lg.issue()
        def c2():
            for w in range(8):
                a(f"ds_read_b32 {v(CP+w)}, {v(CA+1)} offset:{w*256}"); tk["c"] = self.lg.issue()
        def c3():
            self.wait(lt=tk["c"])
            for w in range(1, 8): a(f"v_add_f32 {v(CP)}, {v(CP)}, {v(CP+w)}")
            a(f"ds_write_b32 {v(CA)}, {v(CP)}"); self.lg.issue()
        at(31, c1); at(36, c2); at(38, c3)
        def rcall(lo, hi):
            L = a.newlabel("Lrc")
            a(f"s_sub_u32 {s(t0)}, {s(sUnit)}, {lo}\ns_cmp_ge_u32 {s(t0)}, {hi - lo}\ns_cbranch_scc1 {L}")
            a(f"s_call_b64 {s(sRet,2)}, L_ri")
            a.label(L)
        def rp():
            L = a.newlabel("Lri")
            a(f"s_cmp_ge_u32 {s(sW)}, 4\ns_cbranch_scc1 {L}")
            self.resid_issue()
            a.label(L)
            rcall(768, 864)
        at(34, rp)
        if self.opt.get("zf") == 3: at(35, lambda: self.zfill(116, 8, sW1k))
        RK = self.opt.get("rk", 20)
        at(RK, lambda: (self.repack_unit(), rcall(0, 768)))
        self.outofline(self.repack_issue)
        fill = {}
        late = [l for l in self.capture(self.consts) if not l.startswith(";")]
        assert self.spread(fill, 0, late, 12) <= 10
        for k in range(40):
            p, i = k >> 2, k & 3
            if k == 23:
                for r in range(4): a(f"v_add_u32 {v(self.vWr+r)}, {16*24*144}, {v(self.vWr+r)}")
                wbase[0] = 24
            if i == 2 and p < 9:
                need = wneed(p + 1)
                if p == WLAST - 1: need = wneed(7)
                if p >= WLAST: need = 11
                self.wait(vt=max(self.xtk[p + 1], self.wtk[need]), lt=wl[k])
                if p in (2, 5, 8) and self.opt.get("p_st"): self.stamp(f"pan{p}")
                if not (self.opt.get("fewbar") and p in (3, 5, 6, 7)): a("s_barrier")
            else:
                self.wait(lt=max(wl[k], xl[p]))
                if k == 38: a("s_barrier")
            for t in range(2):
                c = v(ACC + 16 * t, 16) if k else "0"
                a(f"v_mfma_f32_32x32x16_bf16 {v(ACC+16*t,16)}, {v(WF+8*i+4*t,4)}, {v(XF[p&1]+4*i,4)}, {c}")
                for f in fill.get(k, [])[6 * t: 6 * t + 6]: a(f)
            if i == 2 and p < 9: xreads(p + 1)
            if k + 2 < 40: wl[k + 2] = trreads(WF + 8 * ((k + 2) & 3), self.vWr, k + 2)
            if p < 8:
                if i == 0: self.xdma(p + 2, 0); self.xdma(p + 2, 1)
                elif i < 3: self.xdma(p + 2, i + 1)
            if i in (1, 3) and len(self.wtk) < 12:
                n0 = 4 + (8 * (2 * p + i // 2 + 1) + 10) // 11
                if i == 3: n0 = max(n0, wneed(p + 2) + 1)
                while len(self.wtk) < min(n0, 12): self.wround()
            for f in post.get(k, []): f()
        assert len(self.wtk) == 12
        self.vm.reset(); self.lg.reset()
        self.stamp("p1a_loop")

    def finstats(self, S, Q, tmp):
        a = self.a
        a(f"""
        v_mov_b32 {v(tmp)}, {v(S)}
        v_mov_b32 {v(tmp+1)}, {v(Q)}
        s_nop 1
        v_permlane32_swap_b32 {v(S)}, {v(tmp)}
        v_permlane32_swap_b32 {v(Q)}, {v(tmp+1)}
        v_add_f32 {v(S)}, {v(S)}, {v(tmp)}
        v_add_f32 {v(Q)}, {v(Q)}, {v(tmp+1)}
        v_mul_f32 {v(S)}, {hexf(1/640)}, {v(S)}
        v_mul_f32 {v(Q)}, {hexf(1/640)}, {v(Q)}
        v_fma_f32 {v(Q)}, -{v(S)}, {v(S)}, {v(Q)}
        v_max_f32 {v(Q)}, 0, {v(Q)}
        v_add_f32 {v(Q)}, {hexf(1e-5)}, {v(Q)}
        v_rsq_f32 {v(self.vRstd)}, {v(Q)}
        s_nop 0
        v_mul_f32 {v(self.vNm)}, -1.0, {v(self.vRstd)}
        v_mul_f32 {v(self.vNm)}, {v(S)}, {v(self.vNm)}
        """)

    def loadstats(self, sT, dst):
        a = self.a
        a(f"""
        s_lshl_b32 {s(t5)}, {s(sT)}, 11
        s_add_u32 {s(t5)}, {s(t5)}, {STATS}
        buffer_load_dwordx4 {v(dst,4)}, {v(vL16)}, {s(S_WS,4)}, {s(t5)} offen sc1
        buffer_load_dwordx4 {v(dst+4,4)}, {v(vL16)}, {s(S_WS,4)}, {s(t5)} offen offset:1024 sc1
        """)
        self.vm.issue(); return self.vm.issue()

    def usestats(self, src):
        a = self.a
        a(f"""
        v_add_f32 {v(self.vS)}, {v(src)}, {v(src+2)}
        v_add_f32 {v(self.vQ)}, {v(src+1)}, {v(src+3)}
        v_add_f32 {v(src+4)}, {v(src+4)}, {v(src+6)}
        v_add_f32 {v(src+5)}, {v(src+5)}, {v(src+7)}
        v_add_f32 {v(self.vS)}, {v(self.vS)}, {v(src+4)}
        v_add_f32 {v(self.vQ)}, {v(self.vQ)}, {v(src+5)}
        """)
        self.finstats(self.vS, self.vQ, src)

    KEEP = 48
    RAW = 88
    RL = RES + 10
    O0, O1 = 88, 104
    QM1, aV = 120, 124
    FA = 126
    HT = 128
    QM, QT = 136, 140
    KT = 142
    KM = [144, 148]
    SA, SB = 160, 192
    VA, VB = [224, 228], [232, 236]
    WREG, HR = 88, 172
    vPa, vPd = RES, RES + 1
    HX = RES + 2

    def epi1(self):
        a = self.a
        ACC = self.ACC
        CS = 192
        rq, nq = self.vS, self.vQ
        KM, VM, KVT = CS, CS + 4, CS + 8
        VT = self.SA
        for f in self.epi1_pre(): a(f) if isinstance(f, str) else f()
        a.label("L_epi1")
        def quad(q, r):
            for i in range(2): a(f"v_pk_fma_f32 {v(ACC+4*q+2*i,2)}, {v(ACC+4*q+2*i,2)}, {v(r,2)}, {v(CS+4*q+2*i,2)} op_sel_hi:[1,0,1]")
        def cvt(dst, q):
            a(f"v_cvt_pk_bf16_f32 {v(dst)}, {v(ACC+4*q)}, {v(ACC+4*q+1)}")
            a(f"v_cvt_pk_bf16_f32 {v(dst+1)}, {v(ACC+4*q+2)}, {v(ACC+4*q+3)}")
        for q in (0, 1, 2, 3, 4): quad(q, self.vRstd)
        cvt(VM, 2); cvt(VM + 2, 3); cvt(KVT, 4); cvt(KM, 0); cvt(KM + 2, 1)
        for q in range(5, 8): quad(q, rq)
        a(f"v_mfma_f32_32x32x16_bf16 {v(VT,16)}, {v(VM,4)}, {v(SEL1,4)}, 0")
        a(f"v_mfma_f32_32x32x8_bf16 {v(VT,16)}, {v(KVT,2)}, {v(SEL2,2)}, {v(VT,16)}")
        a(f"""
        ds_write_b128 {v(vAKw)}, {v(KM,4)} offset:{kvslot(0)}
        s_mov_b32 exec_hi, 0
        ds_write_b64 {v(vATw)}, {v(KVT,2)} offset:{kvslot(0)+2368}
        s_mov_b64 exec, -1
        """)
        cvt(self.QT, 5); cvt(self.QM, 6); cvt(self.QM + 2, 7)
        a("s_nop 1")
        VP = CS + 12
        for i in range(8): a(f"v_cvt_pk_bf16_f32 {v(VP+i)}, {v(VT+2*i)}, {v(VT+2*i+1)}")
        for i in range(8): a(f"v_or_b32 {v(VP+i)}, {v(VP+i)}, {v(vOnesM)}")
        a(f"""
        s_mov_b32 exec_lo, 0x1fffff
        s_mov_b32 exec_hi, 0x1fffff
        ds_write_b128 {v(vAVw)}, {v(VP,4)} offset:{kvslot(0)+1024}
        ds_write_b128 {v(vAVw)}, {v(VP+4,4)} offset:{kvslot(0)+1696}
        s_mov_b64 exec, -1
        """)

    def epi1_pre(self):
        a = self.a
        CS, rq, nq = 192, self.vS, self.vQ
        c = math.log2(math.e) / math.sqrt(20.0)
        tk = {}
        def rd(q):
            def f():
                a(f"ds_read_b128 {v(CS+4*q,4)}, {v(vT)} offset:{32*q}"); tk[q] = self.lg.issue()
            return f
        o = [f"v_lshlrev_b32 {v(vT)}, 4, {v(vHH)}", f"v_add_u32 {v(vT)}, {TAB_CS1}, {v(vT)}"] + [rd(q) for q in range(8)]
        def poll():
            L = a.newlabel("Lep")
            a(f"s_cmp_lt_u32 {s(sW)}, 4\ns_cbranch_scc1 {L}")
            a(f"""
            s_bitcmp1_b32 {s(sXcc)}, 0
            s_mov_b32 {s(sOrd)}, {hex(self.ORD[0])}
            s_cmov_b32 {s(sOrd)}, {hex(self.ORD[1])}
            v_and_b32 {v(self.vPa)}, 28, {v(vF32)}
            v_bfe_u32 {v(self.vPa)}, {s(sOrd)}, {v(self.vPa)}, 3
            v_xor_b32 {v(self.vPa)}, {s(sX)}, {v(self.vPa)}
            v_lshlrev_b32 {v(self.vPa)}, 9, {v(self.vPa)}
            v_lshl_add_u32 {v(self.vPa)}, {v(vHH)}, 2, {v(self.vPa)}
            v_mov_b32 {v(self.vPd)}, 0
            """)
            if self.opt.get("epoll"): self.kv_pollissue(2)
            a.label(L)
        o += f"""v_mul_f32 {v(rq)}, {hexf(c)}, {v(self.vRstd)}
        v_mul_f32 {v(nq)}, {hexf(c)}, {v(self.vNm)}
        s_mul_i32 {s(t2)}, {s(sT32)}, {TG}
        s_add_u32 {s(t2)}, {s(t2)}, {s(sKV)}
        s_lshl_b32 {s(t3)}, {s(sX)}, 9
        s_add_u32 {s(t3)}, {s(t3)}, {s(sFT)}
        s_and_b32 {s(t0)}, {s(sW)}, 4
        s_add_u32 {s(t3)}, {s(t3)}, {s(t0)}
        s_add_u32 {s(t1)}, {s(sLayer)}, 1
        v_mov_b32 {v(self.FA)}, 0
        v_mov_b32 {v(self.FA+1)}, {s(t1)}
        s_mul_i32 {s(t0)}, {s(sH)}, 5
        s_lshr_b32 {s(t0)}, {s(t0)}, 2
        s_add_u32 {s(t0)}, {s(t0)}, {QS}
        v_add_u32 {v(self.HT)}, {s(t0)}, {v(vL16)}
        v_lshl_add_u32 {v(self.HT+1)}, {v(vF32)}, 1, {s(t0)}
        v_add_u32 {v(vT)}, {s(sWTB)}, {v(vL16)}""".split("\n")
        o.append(lambda: self.wait(lt=tk[7]))
        o += [f"v_mul_f32 {v(CS+i)}, {v(self.vNm if i < 20 else nq)}, {v(CS+i)}" for i in range(32)]
        o.append(poll)
        return o

    def tile_read(self):
        for i in range(3): self.a(f"ds_read_b128 {v(212+4*i,4)}, {v(vT)} offset:{kvslot(0)+1024*i}")

    def tile_store(self, waits):
        a = self.a
        for i in range(3):
            if waits: a(f"s_waitcnt lgkmcnt({2-i})")
            if i == 2: a("s_mov_b32 exec_hi, 0xff")
            a(f"buffer_store_dwordx4 {v(212+4*i,4)}, {v(vL16)}, {s(S_WS,4)}, {s(t2)} offen offset:{1024*i} sc1")
        a("s_mov_b32 exec_hi, -1")

    def tileflag(self):
        self.a(f"s_mov_b64 exec, 1\nbuffer_store_dword {v(self.FA+1)}, {v(self.FA)}, {s(S_WS,4)}, {s(t3)} offen sc1\ns_mov_b64 exec, -1")

    def repack_unit(self):
        st = (3, 6, 9, 12)
        rk = [12 + st.index(j) if j in st else j - sum(j > q for q in st) for j in range(16)]
        RANK = sum(r << (4 * j) for j, r in enumerate(rk))
        L = self.a.newlabel("Lru")
        self.a(f"""
        s_mov_b32 {s(t0)}, {hex(RANK & 0xffffffff)}
        s_mov_b32 {s(t1)}, {hex(RANK >> 32)}
        s_lshl_b32 {s(t2)}, {s(sC16)}, 2
        s_lshr_b64 {s(t0,2)}, {s(t0,2)}, {s(t2)}
        s_and_b32 {s(t0)}, {s(t0)}, 15
        s_lshr_b32 {s(t1)}, {s(sJ)}, 4
        s_lshr_b32 {s(t2)}, {s(sH)}, 9
        s_add_u32 {s(t1)}, {s(t1)}, {s(t2)}
        s_cmp_ge_u32 {s(t0)}, 12
        s_cselect_b32 {s(t2)}, 4, 12
        s_cselect_b32 {s(t3)}, {96 - 12}, 0
        s_mul_i32 {s(t1)}, {s(t1)}, {s(t2)}
        s_add_u32 {s(t1)}, {s(t1)}, {s(t0)}
        s_add_u32 {s(t1)}, {s(t1)}, {s(t3)}
        s_lshl_b32 {s(t1)}, {s(t1)}, 3
        s_add_u32 {s(sUnit)}, {s(t1)}, {s(sX)}
        s_cmp_ge_u32 {s(sW)}, 4
        s_cbranch_scc1 {L}
        s_mul_i32 {s(t1)}, {s(sUnit)}, {9*128}
        s_mov_b32 {s(sUnit)}, 1000
        s_cmp_ge_u32 {s(t1)}, 819200
        s_cbranch_scc1 {L}
        v_lshl_add_u32 v112, {v(vLane)}, 7, {s(t1)}
        v_min_u32 v112, {819200 - 128}, v112
        s_mov_b64 exec, 0x1ff
        global_load_dword v113, v112, {s(P_WO,2)}
        s_mov_b64 exec, -1
        """)
        self.a.label(L)

    def repack_issue(self):
        a = self.a
        A, B, C = 112, 113, 114
        sSoA, sSoB = sRd, sRc
        a.label("L_ri")
        a(f"""
        s_mov_b32 {s(S_RAW+3)}, 0x20000
        s_cmp_lt_u32 {s(sUnit)}, 384
        s_cbranch_scc1 L_ri_w2
        s_cmp_lt_u32 {s(sUnit)}, 704
        s_cbranch_scc1 L_ri_w1
        ; ---- wo
        s_mov_b32 {s(S_RAW)}, {s(P_WO)}
        s_mov_b32 {s(S_RAW+1)}, {s(P_WO+1)}
        s_mov_b32 {s(S_RAW+2)}, 819200
        s_sub_u32 {s(t5)}, {s(sUnit)}, 704
        s_mul_i32 {s(sSoA)}, {s(t5)}, 5120
        s_add_u32 {s(sSoA)}, {s(sSoA)}, {W3P}
        s_mul_i32 {s(t4)}, {s(t5)}, 3277
        s_lshr_b32 {s(t4)}, {s(t4)}, 16              ; c
        s_mul_i32 {s(t0)}, {s(t4)}, 20
        s_sub_u32 {s(t5)}, {s(t5)}, {s(t0)}          ; s
        s_mul_i32 {s(t0)}, {s(t5)}, 40
        s_mul_i32 {s(t6)}, {s(t5)}, 160
        s_sub_u32 {s(t6)}, {s(t6)}, {16*160-16}
        s_mov_b32 {s(t1)}, 20
        s_cmp_lt_u32 {s(t5)}, 16
        s_cselect_b32 {s(t0)}, {s(t0)}, {s(t6)}
        s_cselect_b32 {s(t2)}, 4, 2
        s_cselect_b32 {s(t3)}, 15, 3
        s_branch L_ri_a
        """)
        a.label("L_ri_w2")
        a(f"""
        s_mov_b32 {s(S_RAW)}, {s(P_W2)}
        s_mov_b32 {s(S_RAW+1)}, {s(P_W2+1)}
        s_mov_b32 {s(S_RAW+2)}, 1966080
        s_mul_i32 {s(sSoA)}, {s(sUnit)}, 5120
        s_add_u32 {s(sSoA)}, {s(sSoA)}, {W5P}
        s_mul_i32 {s(t4)}, {s(sUnit)}, 1366
        s_lshr_b32 {s(t4)}, {s(t4)}, 16              ; c = u/48
        s_mul_i32 {s(t0)}, {s(t4)}, 48
        s_sub_u32 {s(t0)}, {s(sUnit)}, {s(t0)}
        s_and_b32 {s(t1)}, {s(t0)}, 15
        s_mul_i32 {s(t1)}, {s(t1)}, 3
        s_lshr_b32 {s(t0)}, {s(t0)}, 4
        s_add_u32 {s(t0)}, {s(t0)}, {s(t1)}
        s_lshl_b32 {s(t0)}, {s(t0)}, 5
        s_mov_b32 {s(t1)}, 0
        s_mov_b32 {s(t2)}, 5
        s_mov_b32 {s(t3)}, 31
        """)
        a.label("L_ri_a")
        a(f"""
        s_mul_i32 {s(t0)}, {s(t0)}, 1280
        s_mul_i32 {s(t4)}, {s(t4)}, 160
        s_add_u32 {s(t0)}, {s(t0)}, {s(t4)}
        """)
        for ii in range(5):
            a(f"""
            v_add_u32 {v(A)}, {64*ii}, {v(vLane)}
            v_mul_u32_u24 {v(B)}, 6554, {v(A)}
            v_lshrrev_b32 {v(B)}, 16, {v(B)}          ; row
            v_mul_u32_u24 {v(C)}, 10, {v(B)}
            v_sub_u32 {v(A)}, {v(A)}, {v(C)}          ; piece
            v_lshrrev_b32 {v(C)}, {s(t2)}, {v(B)}
            v_and_b32 {v(B)}, {s(t3)}, {v(B)}
            v_mad_u32_u24 {v(B)}, {v(C)}, {s(t1)}, {v(B)}
            v_mul_u32_u24 {v(B)}, 1280, {v(B)}
            v_lshl_add_u32 {v(A)}, {v(A)}, 4, {v(B)}
            buffer_load_dwordx4 {v(self.RAW+4*ii,4)}, {v(A)}, {s(S_RAW,4)}, {s(t0)} offen
            """)
        a("s_branch L_ri_e")
        a.label("L_ri_w1")
        a(f"""
        s_mov_b32 {s(S_RAW)}, {s(P_W1)}
        s_mov_b32 {s(S_RAW+1)}, {s(P_W1+1)}
        s_mov_b32 {s(S_RAW+2)}, 1966080
        s_sub_u32 {s(t5)}, {s(sUnit)}, 384
        s_mul_i32 {s(sSoA)}, {s(t5)}, 6144
        s_add_u32 {s(sSoA)}, {s(sSoA)}, {W4P}
        s_mul_i32 {s(sSoB)}, {s(t5)}, 384
        s_add_u32 {s(sSoB)}, {s(sSoB)}, {CS4P}
        s_mul_i32 {s(t4)}, {s(t5)}, 3277
        s_lshr_b32 {s(t4)}, {s(t4)}, 16              ; c
        s_mul_i32 {s(t0)}, {s(t4)}, 20
        s_sub_u32 {s(t0)}, {s(t5)}, {s(t0)}          ; sp
        s_mul_i32 {s(t0)}, {s(t0)}, {32*3072}
        s_mul_i32 {s(t4)}, {s(t4)}, 192
        s_add_u32 {s(t0)}, {s(t0)}, {s(t4)}
        """)
        for i in range(6):
            a(f"""
            v_add_u32 {v(A)}, {64*i}, {v(vLane)}
            v_mul_u32_u24 {v(B)}, 5462, {v(A)}
            v_lshrrev_b32 {v(B)}, 16, {v(B)}          ; row = p/12
            v_mul_u32_u24 {v(B)}, {3072-192}, {v(B)}
            v_lshl_add_u32 {v(A)}, {v(A)}, 4, {v(B)}
            buffer_load_dwordx4 {v(self.RAW+4*i,4)}, {v(A)}, {s(S_RAW,4)}, {s(t0)} offen
            """)
        a.label("L_ri_e")
        a(f"s_setpc_b64 {s(sRet,2)}")

    def resid_issue(self):
        a = self.a
        A, B, C = 112, 113, 114
        a(f"""
        v_and_b32 {v(A)}, 15, {v(vLane)}
        v_mul_u32_u24 {v(A)}, 1280, {v(A)}
        v_lshrrev_b32 {v(B)}, 4, {v(vLane)}
        v_lshl_add_u32 {v(C)}, {v(B)}, 3, {v(A)}
        v_lshl_add_u32 {v(A)}, {v(B)}, 4, {v(A)}
        s_mul_i32 {s(t0)}, {s(sT16)}, {16*1280}
        s_mul_i32 {s(t1)}, {s(sC8)}, 160
        s_add_u32 {s(t0)}, {s(t0)}, {s(t1)}
        buffer_load_dwordx4 {v(self.RL,4)}, {v(A)}, {s(S_X,4)}, {s(t0)} offen
        buffer_load_dwordx4 {v(self.RL+4,4)}, {v(A)}, {s(S_X,4)}, {s(t0)} offen offset:64
        buffer_load_dwordx2 {v(self.RL+8,2)}, {v(C)}, {s(S_X,4)}, {s(t0)} offen offset:128
        """)

    def unpack_add(self, src, add):
        a = self.a
        for i in range(10):
            if add:
                a(f"v_lshlrev_b32 {v(vT)}, 16, {v(src+i)}")
                a(f"v_add_f32 {v(RES+2*i)}, {v(RES+2*i)}, {v(vT)}")
                a(f"v_and_b32 {v(vT)}, 0xffff0000, {v(src+i)}")
                a(f"v_add_f32 {v(RES+2*i+1)}, {v(RES+2*i+1)}, {v(vT)}")
            else:
                a(f"v_lshlrev_b32 {v(RES+2*i)}, 16, {v(src+i)}")
                a(f"v_and_b32 {v(RES+2*i+1)}, 0xffff0000, {v(src+i)}")

    def repack_do(self):
        a = self.a
        A, B, C = self.SA, self.SA + 1, self.SA + 2
        FR = self.SA + 8
        cs = self.SA + 4
        sM0A, sSoA, sSoB = sRs, sRd, sRc
        a(f"s_cmp_ge_u32 {s(sUnit)}, 864\ns_cbranch_scc1 L_rd_n")
        a(f"s_mul_i32 {s(sRs)}, {s(sH)}, 6\ns_add_u32 {s(sRs)}, {s(sRs)}, {RPK}")
        a(f"v_add_u32 {v(A)}, {s(sM0A)}, {v(vL16)}")
        for i in range(6): a(f"ds_write_b128 {v(A)}, {v(self.RAW+4*i,4)} offset:{1024*i}")
        a(f"""
        s_cmp_lt_u32 {s(sUnit)}, 384
        s_cbranch_scc1 L_rd_a
        s_cmp_lt_u32 {s(sUnit)}, 704
        s_cbranch_scc1 L_rd_b
        """)
        a.label("L_rd_a")
        a(f"""
        v_lshrrev_b32 {v(A)}, 4, {v(vLane)}
        v_bfe_u32 {v(B)}, {v(vLane)}, 2, 2
        v_lshl_add_u32 {v(A)}, {v(A)}, 3, {v(B)}
        v_mul_u32_u24 {v(A)}, 160, {v(A)}
        v_add_u32 {v(A)}, {s(sM0A)}, {v(A)}
        v_and_b32 {v(C)}, 3, {v(vLane)}
        v_lshl_add_u32 {v(B)}, {v(C)}, 3, {v(A)}
        v_lshl_add_u32 {v(A)}, {v(C)}, 4, {v(A)}
        """)
        for t in range(5):
            for ab in range(2):
                if t < 4: a(f"ds_read_b64_tr_b16 {v(FR+4*t+2*ab,2)}, {v(A)} offset:{64*(t>>1)+8*(t&1)+ab*640}")
                else: a(f"ds_read_b64_tr_b16 {v(FR+4*t+2*ab,2)}, {v(B)} offset:{128+ab*640}")
        a(f"s_add_u32 {s(t0)}, {s(sSoA)}, 4096")
        a("s_waitcnt lgkmcnt(0)")
        for t in range(4): a(f"buffer_store_dwordx4 {v(FR+4*t,4)}, {v(vL16)}, {s(S_WS,4)}, {s(sSoA)} offen offset:{1024*t} sc1")
        a(f"buffer_store_dwordx4 {v(FR+16,4)}, {v(vL16)}, {s(S_WS,4)}, {s(t0)} offen sc1")
        a("s_waitcnt vmcnt(5)\ns_branch L_rd_e")
        a.label("L_rd_b")
        cs = self.SA + 32
        a(f"""
        v_lshrrev_b32 {v(A)}, 4, {v(vLane)}
        v_bfe_u32 {v(B)}, {v(vLane)}, 2, 2
        v_lshl_add_u32 {v(A)}, {v(A)}, 3, {v(B)}
        v_mul_u32_u24 {v(A)}, 192, {v(A)}
        v_add_u32 {v(A)}, {s(sM0A)}, {v(A)}
        v_and_b32 {v(C)}, 3, {v(vLane)}
        v_lshl_add_u32 {v(A)}, {v(C)}, 4, {v(A)}
        """)
        for t in range(6):
            for ab in range(2):
                a(f"ds_read_b64_tr_b16 {v(FR+4*t+2*ab,2)}, {v(A)} offset:{64*(t>>1)+8*(t&1)+ab*4*192}")
        for t in range(6): a(f"v_mov_b32 {v(cs+t)}, 0")
        a(f"""
        v_lshlrev_b32 {v(C)}, 2, {v(C)}
        v_lshl_add_u32 {v(C)}, {v(B)}, 5, {v(C)}
        v_lshl_add_u32 {v(C)}, {v(vHH)}, 4, {v(C)}      ; (8*(f>>2) + 4*half + (f&3)) * 4
        s_add_u32 {s(t0)}, {s(sSoA)}, 4096
        s_waitcnt lgkmcnt(0)
        """)
        for f in range(6):
            so, off = (sSoA, 1024 * f) if f < 4 else (t0, 1024 * (f - 4))
            a(f"buffer_store_dwordx4 {v(FR+4*f,4)}, {v(vL16)}, {s(S_WS,4)}, {s(so)} offen offset:{off} sc1")
        for r in range(4):
            for t in range(6):
                a(f"v_dot2c_f32_bf16 {v(cs+t)}, {s(sOnes)}, {v(FR+4*t+r)}")
        a("s_nop 2")
        for p in range(3): a(f"v_permlane32_swap_b32 {v(cs+2*p)}, {v(cs+2*p+1)}")
        for p in range(3): a(f"v_add_f32 {v(cs+2*p)}, {v(cs+2*p)}, {v(cs+2*p+1)}")
        for p in range(3): a(f"v_mov_b32 {v(cs+2*p+1)}, {v(cs+2*p)}")
        a("s_nop 1")
        for p in range(3): a(f"v_permlane16_swap_b32 {v(cs+2*p)}, {v(cs+2*p+1)}")
        for p in range(3): a(f"v_add_f32 {v(cs+2*p)}, {v(cs+2*p)}, {v(cs+2*p+1)}")
        for p in range(3): a(f"buffer_store_dword {v(cs+2*p)}, {v(C)}, {s(S_WS,4)}, {s(sSoB)} offen offset:{128*p} sc1")
        a("s_waitcnt vmcnt(9)\ns_branch L_rd_e")
        a.label("L_rd_n")
        a("s_waitcnt vmcnt(0)")
        a.label("L_rd_e")
        a(f"s_or_b32 {s(sUnit)}, {s(sUnit)}, 1024")

    SCHED = {0: ["w0", "z0", "rk"], 3: ["s3p", "rvb"], 6: ["z1", "rva"], 10: ["s0"], 14: ["2bc", "rkt"],
             22: ["s1"], 27: ["s2"]}

    def att_ops(self, n):
        X, Y = (self.SA, self.SB) if n % 2 == 0 else (self.SB, self.SA)
        t = lambda m: kvslot(m >> 3) + (m & 7) * TB
        p = n & 1
        sm = lambda O, vf, q: f"v_smfmac_f32_32x32x32_bf16 {v(O,16)}, {v(vf,4)}, {v(q,8)}, {v(vIdx)}"
        return {
            "s0": sm(self.O0, self.VA[p], X), "s1": sm(self.O0, self.VB[p], X + 8),
            "s2": sm(self.O1, self.VA[p], X + 16), "s3p": sm(self.O1, self.VB[p ^ 1], Y + 24),
            "rk": f"ds_read_b128 {v(self.KM[p],4)}, {v(vL16)} offset:{t(n+2)}",
            "rkt": f"ds_read_b64 {v(self.KT,2)}, {v(vAKt)} offset:{t(n+2)+2368}" if p == 0 else None,
            "rva": f"ds_read_b128 {v(self.VA[p^1],4)}, {v(self.aV)} offset:{t(n+1)+1024}",
            "rvb": f"ds_read_b128 {v(self.VB[p^1],4)}, {v(self.aV)} offset:{t(n+1)+1696}",
            "w0": "s_waitcnt lgkmcnt(0)",
            "z0": f"v_mfma_f32_32x32x16_bf16 {v(Y,16)}, {v(self.KM[p^1],4)}, {v(self.QM,4)}, 0",
            "z1": f"v_mfma_f32_32x32x16_bf16 {v(Y+16,16)}, {v(self.KM[p^1],4)}, {v(self.QM1,4)}, 0",
            "2bc": f"v_mfma_f32_32x32x4_2b_bf16 {v(Y,32)}, {v(self.KT,2)}, {v(self.QT,2)}, {v(Y,32)} cbsz:1 abid:{p^1}",
        }

    ABARS = [6, 10, 14, 22, 30, 38, 46, 54, 56, 63]

    def att_compute(self):
        a = self.a
        HT = self.HT
        self.tile_read()
        a(f"""
        v_cmp_lt_u32 vcc, 80, {v(vF32)}
        s_movk_i32 {s(t0)}, 96
        v_cmp_ne_u32 {s(sEx,2)}, {s(t0)}, {v(vF32)}
        v_mov_b32 {v(self.aV)}, 0x30000
        s_and_b64 vcc, vcc, {s(sEx,2)}
        s_mov_b64 {s(sChk,2)}, -1
        s_setprio 1
        v_cndmask_b32 {v(self.aV)}, {v(vAVr)}, {v(self.aV)}, vcc
        """)
        for i in range(16): a(f"v_mov_b32 {v(self.O0+i)}, 0")
        self.tile_store(True)
        for i in range(16): a(f"v_mov_b32 {v(self.O1+i)}, 0")
        L0, L1 = a.newlabel("Lres"), a.newlabel("Lres")
        a(f"s_cmp_eq_u32 {s(sLayer)}, 0\ns_cbranch_scc1 {L0}")
        a.label(L1)
        self.outofline(lambda: (a.label(L0), a("s_waitcnt vmcnt(3)"), self.unpack_add(self.RL, False), a(f"s_branch {L1}")))
        a("s_waitcnt lgkmcnt(0)\ns_barrier")
        self.stamp("att_start")
        p2, p1 = self.att_ops(-2), self.att_ops(-1)
        a(p2["rk"])
        a(f"ds_read_b128 {v(self.QM1,4)}, {v(HT)}")
        a(p2["rkt"])
        a(f"s_mov_b32 exec_lo, 0\nds_read_b64 {v(self.QT,2)}, {v(HT+1)} offset:1024\ns_mov_b32 exec_lo, -1")
        for k in ("rk", "rva", "rvb"): a(p1[k])
        a("s_waitcnt lgkmcnt(6)"); a(p1["z0"])
        a("s_waitcnt lgkmcnt(5)"); a(p1["z1"])
        a("s_waitcnt lgkmcnt(3)\ns_nop 8"); a(p1["2bc"])
        a(f"v_mov_b32 {v(HT+2)}, {STP}\ns_nop 15")
        a(".p2align 3")
        for n in range(64):
            ops = self.att_ops(n)
            X = self.SA if n % 2 == 0 else self.SB
            for e in range(32):
                for x in self.SCHED.get(e, []):
                    if n == 0 and x == "s3p": continue
                    if n == 63 and x in ("z0", "z1", "2bc", "rva", "rvb"): continue
                    if n >= 62 and x in ("rk", "rkt"): continue
                    if ops[x]: a(ops[x])
                    if x == "w0" and n in self.ABARS:
                        a("s_barrier")
                        if n == 6: self.stamp("att_b0")
                        elif self.opt.get("c_st"): self.stamp(f"c{n}")
                    if x == "2bc" and n == self.opt.get("fstep", 1): a("s_waitcnt vmcnt(0)"); self.tileflag()
                    if x == "s0" and n == 62: a(f"ds_read_b32 {v(HT+3)}, {v(HT+2)}")
                a(f"v_exp_f32 {v(X+e)}, {v(X+e)}")
        a(f"v_readfirstlane_b32 {s(sFast)}, {v(HT+3)}\ns_nop 0")
        a(self.att_ops(64)["s3p"])
        self.stamp("att_end")
        a.label("L_att_fin")

    def att_publish(self):
        a = self.a
        fl = self.mode
        Z, R, P = self.HT, self.HT + 2, 240
        a(f"s_mov_b32 {s(t2)}, {8*OST}")
        for i, O in enumerate((self.O0, self.O1)):
            a(f"s_mov_b32 exec_lo, 0\nv_mov_b32 {v(O+12)}, {v(O+8)}\ns_mov_b32 exec_lo, -1")
            a(f"v_rcp_f32 {v(R)}, {v(O+12)}\ns_nop 0")
            for q in range(6): a(f"v_pk_mul_f32 {v(O+2*q,2)}, {v(O+2*q,2)}, {v(R,2)} op_sel_hi:[1,0]")
            for q in range(6): a(f"v_cvt_pk_bf16_f32 {v(P+8*i+q)}, {v(O+2*q)}, {v(O+2*q+1)}")
            so = s(t2) if i else "0"
            a(f"""
            buffer_store_dwordx4 {v(P+8*i,4)}, {v(vOm)}, {s(S_WS,4)}, {so} offen {fl}
            s_mov_b32 exec_hi, 0
            buffer_store_dwordx2 {v(P+8*i+4,2)}, {v(vOt)}, {s(S_WS,4)}, {so} offen {fl}
            s_mov_b32 exec_hi, -1
            """)
        for i, O in enumerate((self.O0, self.O1)):
            a(f"v_pk_mul_f32 {v(Z,2)}, {v(O,2)}, 0 op_sel_hi:[1,0]")
            for q in range(1, 6): a(f"v_pk_fma_f32 {v(Z,2)}, {v(O+2*q,2)}, 0, {v(Z,2)} op_sel_hi:[1,0,1]")
            a(f"v_add_f32 {v(Z)}, {v(Z)}, {v(Z+1)}\nv_add_f32 {v(Z)}, {v(Z)}, {v(O+12)}")
            a(f"v_cmp_nle_f32 vcc, {hexf(2.0**-16)}, {v(Z)}")
            a(f"s_or_b64 {s(sEx,2)}, vcc, {s(sEx,2)}" if i else f"s_mov_b64 {s(sEx,2)}, vcc")
            a(f"v_cmp_nge_f32 vcc, {hexf(2.0**64)}, {v(Z)}\ns_or_b64 {s(sEx,2)}, vcc, {s(sEx,2)}")
        if self.force_slow: a(f"s_mov_b64 {s(sEx,2)}, -1")
        a(f"""
        s_lshl_b32 {s(t0)}, {s(sT32)}, 7
        s_lshl_b32 {s(t1)}, {s(sJ)}, 2
        s_add_u32 {s(t0)}, {s(t0)}, {s(t1)}
        s_add_u32 {s(t1)}, {s(sLayer)}, 1
        v_lshlrev_b32 {v(Z)}, 9, {v(vLane)}
        v_mov_b32 {v(Z+1)}, {s(t1)}
        s_and_b64 {s(sEx,2)}, {s(sEx,2)}, {s(sChk,2)}
        s_cbranch_scc1 L_slow
        """)

    def att_flag(self):
        Z = self.HT
        self.a(f"""
        s_mov_b64 exec, 3
        s_waitcnt vmcnt(0)
        buffer_store_dword {v(Z+1)}, {v(Z)}, {s(S_WS,4)}, {s(t0)} offen {self.mode}
        s_mov_b64 exec, -1
        """)
        self.vm.reset()
        self.stamp("att_pub")

    def kv_dma(self, b, halves=(0, 1)):
        a = self.a
        a(f"""
        s_bfe_u32 {s(t0)}, {s(sOrd)}, {hex(0x30000 + 4*b)}
        s_lshl_b32 {s(t0)}, {s(t0)}, 3
        s_xor_b32 {s(t0)}, {s(t0)}, {s(sT32)}
        s_mul_i32 {s(t0)}, {s(t0)}, {TG}
        s_add_u32 {s(t0)}, {s(t0)}, {s(sKV)}
        s_sub_u32 {s(t1)}, {s(t0)}, {4*TG}
        """)
        for r, d in [((t1, -4 * TB), (t0, 0))[i] for i in halves]:
            a(f"s_add_u32 m0, {s(sWTB)}, {(kvslot(b) + d) & 0xffffffff}\ns_nop 0")
            for off in (0, 1024, 2048):
                if off == 2048: a("s_mov_b32 exec_hi, 15")
                a(f"buffer_load_dwordx4 {v(vL16)}, {s(S_WS,4)}, {s(r)} offen offset:{off} sc1 lds")
                tk = self.vm.issue()
            a("s_mov_b32 exec_hi, -1")
        return tk

    def elect(self, idx, val, skip):
        H = self.HX
        self.a(f"""
        v_mov_b32 {v(H)}, {CNT + 4*idx}
        v_mov_b32 {v(H+1)}, 1
        s_mov_b64 exec, 1
        ds_add_rtn_u32 {v(H+2)}, {v(H)}, {v(H+1)}
        s_mov_b64 exec, -1
        s_waitcnt lgkmcnt(0)
        v_readfirstlane_b32 {s(t0)}, {v(H+2)}
        s_and_b32 {s(t0)}, {s(t0)}, 3
        s_cmp_lg_u32 {s(t0)}, 3
        s_cbranch_scc1 {skip}
        """)

    def kv_pollissue(self, blocks):
        self.a(f"s_mov_b32 exec_lo, {blocks}\ns_mov_b32 exec_hi, {blocks}")
        self.a(f"buffer_load_dword {v(self.vPd)}, {v(self.vPa)}, {s(S_WS,4)}, {s(sFT)} offen sc1\ns_mov_b64 exec, -1")

    def kv_mask(self):
        self.a(f"""
        s_add_u32 {s(t1)}, {s(sLayer)}, 1
        v_cmp_le_u32 vcc, {s(t1)}, {v(self.vPd)}
        s_pack_ll_b32_b16 {s(sRdy)}, vcc_lo, vcc_hi
        """)

    def outofline(self, f):
        main = self.a.lines; self.a.lines = self.ool0
        st = (self.vm.issued, self.vm.done, self.lg.issued, self.lg.done)
        f()
        self.vm.issued, self.vm.done, self.lg.issued, self.lg.done = st
        self.a.lines = main

    def kv_need(self, bits):
        a = self.a
        L, D = a.newlabel("Lneed"), a.newlabel("Lneedd")
        a(f"s_andn2_b32 {s(t0)}, {bits}, {s(sRdy)}\ns_cbranch_scc1 {L}")
        a.label(D)
        def f():
            a.label(L)
            if self.opt.get("psl"): a(f"s_sleep {self.opt['psl']}")
            self.kv_pollissue((bits | bits >> 16) & 0xff)
            a("s_waitcnt vmcnt(0)")
            self.kv_mask()
            a(f"""
            s_andn2_b32 {s(t0)}, {bits}, {s(sRdy)}
            s_cbranch_scc0 {D}
            s_sub_u32 {s(sSpin)}, {s(sSpin)}, 1
            s_cbranch_scc0 {L}
            s_mov_b32 {s(sSpin)}, 0
            s_branch {D}
            """)
        self.outofline(f)

    def att_helper(self):
        a = self.a
        H, TH = self.HX, self.opt.get("tha", 12)
        a.label("L_att_helper")
        a(f"s_setprio {self.opt.get('hprio', 3)}")
        a(f"""
        ds_write_b128 {v(self.HT)}, {v(self.QM,4)}
        s_mov_b32 exec_hi, 0
        ds_write_b64 {v(self.HT+1)}, {v(self.QT,2)} offset:1024
        s_mov_b32 exec_hi, -1
        """)
        self.tile_read()
        a("s_waitcnt lgkmcnt(3)\ns_barrier")
        if not self.opt.get("epoll"): self.kv_pollissue(2)
        self.tile_store(True)
        a("s_waitcnt vmcnt(3)")
        self.kv_mask()
        L1, L2, L3, L4, L5, L6, L7 = (a.newlabel("Lah") for _ in range(7))
        a(f"s_andn2_b32 {s(t0)}, 0x20002, {s(sRdy)}\ns_cbranch_scc1 {L1}")
        self.kv_dma(1)
        a("s_waitcnt vmcnt(6)")
        self.tileflag()
        a(f"s_branch {L2}")
        a.label(L1)
        L8 = a.newlabel("Lah")
        a(f"s_andn2_b32 {s(t0)}, 2, {s(sRdy)}\ns_cbranch_scc1 {L8}")
        self.kv_dma(1, (0,))
        a("s_waitcnt vmcnt(3)")
        self.tileflag()
        a(f"s_branch {L2}")
        a.label(L8)
        a("s_waitcnt vmcnt(0)")
        self.stamp("h_ack")
        self.tileflag()
        self.kv_need(2)
        self.stamp("h_need")
        self.kv_dma(1, (0,))
        a(f"s_andn2_b32 {s(t0)}, 0x20000, {s(sRdy)}\ns_cbranch_scc1 {L2}")
        self.kv_dma(1, (1,))
        a.label(L2)
        a(f"s_and_b32 {s(sDone)}, {s(sRdy)}, 0x20000")
        self.kv_pollissue(6)
        late = self.opt.get("rplate")
        if late: a("s_waitcnt vmcnt(0)")
        else: self.repack_do()
        self.stamp("h_rp")
        a("s_barrier")
        if self.opt.get("zf") == 2:
            L = a.newlabel("Lzf")
            a(f"s_cmp_lg_u32 {s(sLayer)}, 0\ns_cbranch_scc1 {L}")
            self.zfill(116, 4, sH)
            a.label(L)
        self.kv_mask()
        a(f"s_cmp_lg_u32 {s(sDone)}, 0\ns_cbranch_scc1 {L3}")
        self.kv_need(0x20000)
        self.kv_dma(1, (1,))
        a.label(L3)
        if late: self.repack_do()
        a(f"s_andn2_b32 {s(sDone)}, 0x40004, {s(sRdy)}\ns_cbranch_scc1 {L4}")
        self.kv_dma(2)
        a(f"s_waitcnt vmcnt(6)\ns_branch {L5}")
        a.label(L4)
        a("s_waitcnt vmcnt(0)")
        a.label(L5)
        a(f"s_cmp_lg_u32 {s(sLayer)}, 0\ns_cbranch_scc1 {L6}")
        self.elect(1, None, L6)
        a(f"s_lshl_b32 {s(t0)}, {s(sX)}, 7\ns_add_u32 {s(t0)}, {s(t0)}, {s(sFKV)}\ns_add_u32 {s(t0)}, {s(t0)}, 4\ns_add_u32 {s(t1)}, {s(sXcc)}, 16")
        self.flagstore(t0, s(t1), "sc1", H, H + 1)
        a.label(L6)
        self.stamp("h_kv1")
        a(f"s_setprio {self.opt.get('hprio2', 3)}")
        a("s_barrier")
        a(f"s_cmp_eq_u32 {s(sDone)}, 0\ns_cbranch_scc1 {L7}")
        self.kv_need(0x40004)
        self.kv_dma(2)
        a.label(L7)
        self.kv_pollissue(0xf8)
        a("s_waitcnt vmcnt(0)")
        self.kv_mask()
        def rpcheck():
            L0, L1, L2, L3, L4 = (a.newlabel("Lrp") for _ in range(5))
            a(f"""
            s_cmp_lg_u32 {s(sLayer)}, 0
            s_cbranch_scc1 {L4}
            s_lshr_b32 {s(t2)}, {s(sH)}, 2
            s_add_u32 {s(t2)}, {s(t2)}, {FKV + 4}
            v_lshlrev_b32 {v(H+4)}, 8, {v(vF32)}
            v_lshl_add_u32 {v(H+4)}, {v(vHH)}, 7, {v(H+4)}
            """)
            LP, LD = a.newlabel("Lrp"), a.newlabel("Lrp")
            a.label(LP)
            a(f"""
            buffer_load_dword {v(H+5)}, {v(H+4)}, {s(S_WS,4)}, {s(t2)} offen sc1
            s_waitcnt vmcnt(0)
            v_cmp_gt_u32 vcc, 16, {v(H+5)}
            s_cbranch_vccz {LD}
            s_mov_b64 exec, vcc
            s_sleep {self.opt.get('rsl', 8)}
            s_sub_u32 {s(sSpin)}, {s(sSpin)}, 1
            s_cbranch_scc0 {LP}
            s_mov_b32 {s(sSpin)}, 0
            """)
            a.label(LD)
            a("s_mov_b64 exec, -1")
            a(f"""
            s_lshr_b32 {s(t0)}, {s(sX)}, 1
            s_lshl_b32 {s(t0)}, {s(t0)}, 10
            s_cmp_lg_u32 {s(t0)}, {s(sH)}
            s_cbranch_scc1 {L1}
            s_add_u32 {s(t0)}, {s(sXcc)}, 16
            v_cmp_eq_u32 vcc, {s(t0)}, {v(H+5)}
            s_bitcmp1_b32 {s(sX)}, 0
            s_cselect_b32 {s(t0)}, vcc_hi, vcc_lo
            s_add_u32 {s(t0)}, {s(t0)}, 1
            s_cselect_b32 {s(t0)}, {0 if self.force_safe else 1}, 0
            v_mov_b32 {v(H)}, {STP}
            v_mov_b32 {v(H+1)}, {s(t0)}
            ds_write_b32 {v(H)}, {v(H+1)}
            """)
            a.label(L1)
            self.elect(2, None, L2)
            a(f"s_branch {L3}")
            a.label(L2)
            a(f"""
            ds_read_b32 {v(H+2)}, {v(H)}
            s_waitcnt lgkmcnt(0)
            v_readfirstlane_b32 {s(t0)}, {v(H+2)}
            s_cmp_eq_u32 {s(t0)}, 4
            s_cbranch_scc1 {L3}
            s_sleep 1
            s_sub_u32 {s(sSpin)}, {s(sSpin)}, 1
            s_cbranch_scc0 {L2}
            s_mov_b32 {s(sSpin)}, 0
            """)
            a.label(L3)
            self.tables()
            a.label(L4)
        def rload(base, n0, reg, i0, i1):
            for i in range(i0, i1):
                a(f"s_add_u32 {s(t0)}, {s(base)}, {s(sH)}\ns_add_u32 {s(t0)}, {s(t0)}, {(n0 + 4*i)*1024}")
                a(f"buffer_load_dwordx4 {v(reg+4*i,4)}, {v(vL16)}, {s(S_WS,4)}, {s(t0)} offen sc1")
                self.vm.issue()
                self.wait(vt=self.vm.issued - TH)
        w4r = lambda i0, i1: (lambda: rload(self.wbase[1], NREG0 - N4, self.WREG, i0, i1))
        w5r = lambda i0, i1: (lambda: rload(self.wbase[2], self.NT - N5, self.HR, i0, i1))
        lds = lambda n0, n1: (lambda: self.dma_run(n0, n1, 4, sH, TH))
        TA, TD = H + 6, H + 7
        def touch(base, per, lo, n, idx, pace=True):
            def f():
                a(f"s_mul_i32 {s(t0)}, {s(idx)}, {per*128}\ns_add_u32 {s(t0)}, {s(t0)}, {base}")
                if lo: a(f"s_add_u32 {s(t0)}, {s(t0)}, {lo*128}")
                a(f"s_bfm_b64 exec, {n}, 0\nbuffer_load_dword {v(TD)}, {v(TA)}, {s(S_WS,4)}, {s(t0)} offen sc1\ns_mov_b64 exec, -1")
                self.vm.issue()
                if pace: self.wait(vt=self.vm.issued - 1)
            return f
        sI5, sIx = sSoA, sSoB
        a(f"""
        v_lshlrev_b32 {v(TA)}, 7, {v(vLane)}
        s_lshr_b32 {s(t0)}, {s(sH)}, 10
        s_lshr_b32 {s(sI5)}, {s(sJ)}, 3
        s_lshl2_add_u32 {s(sI5)}, {s(sI5)}, {s(t0)}
        s_lshl_b32 {s(sIx)}, {s(sX)}, 5
        s_add_u32 {s(sIx)}, {s(sIx)}, {s(sJ)}
        s_lshl2_add_u32 {s(sIx)}, {s(sIx)}, {s(t0)}
        """)
        w5t = [touch(s(self.wbase[2]), 26, 26 * 16 * i, 26, sI5) for i in range(3)]
        ht = [touch(WS_H, 48, 24 * i, 24, sIx) for i in range(2)]
        xt = [touch(WS_X, 20, 0, 20, sIx), touch(STATS, 1, 0, 1, sIx)]
        hq = [touch(WS_H, 48, 12 * i, 12, sIx, False) for i in range(4)] + [touch(WS_X, 20, 10 * i, 10, sIx, False) for i in range(2)]
        sq = touch(STATS, 1, 0, 1, sIx, False)
        w5q = [touch(s(self.wbase[2]), 26, 26 * 16 * i, 26, sI5, False) for i in range(3)]
        plan = [{1: [rpcheck, w4r(0, 4)], 2: [w4r(4, 13), lds(0, 16)], 3: [w4r(13, 21), lds(16, 40)],
                 4: [lds(40, 96), ht[0]], 5: [w5r(0, 21)], 6: [lds(96, 112)],
                 7: [lds(112, NREG0), "mark", ht[1]] + xt, 8: []},
                {1: [rpcheck, w4r(0, 4)], 2: [w4r(4, 13), lds(0, 16)], 3: [w4r(13, 21), lds(16, 40)],
                 4: [lds(40, 96), w5r(0, 6)], 5: [w5r(6, 21), ht[0]], 6: [lds(96, 112)],
                 7: [lds(112, NREG0), "mark", ht[1]] + xt, 8: []},
                {1: [rpcheck, w4r(0, 7)], 2: [w4r(7, 14), lds(0, 32)], 3: [w4r(14, 21), lds(32, 64)],
                 4: [lds(64, 96), w5r(0, 12)], 5: [w5r(12, 21), ht[0], ht[1]], 6: [lds(96, 112)],
                 7: [lds(112, NREG0), "mark"] + xt + [w5t[0]], 8: []},
                {1: [rpcheck, w4r(0, 7)], 2: [w4r(7, 14), lds(0, 32)], 3: [w4r(14, 21), lds(32, 64)],
                 4: [lds(64, 96), w5r(0, 12)], 5: [w5r(12, 21), ht[0]], 6: [lds(96, 112)],
                 7: [lds(112, NREG0), "mark", ht[1]] + xt, 8: []},
                {1: [rpcheck, w4r(0, 7)], 2: [w4r(7, 14), lds(0, 32)], 3: [w4r(14, 21), lds(32, 64), hq[0]],
                 4: [lds(64, 96), w5r(0, 10), hq[1]], 5: [w5r(10, 21), hq[2], hq[3]], 6: [lds(96, 112), hq[4]],
                 7: [lds(112, NREG0), "mark", hq[5], sq], 8: []},
                {1: [rpcheck, w4r(0, 7)], 2: [w4r(7, 14), lds(0, 32)], 3: [w4r(14, 21), lds(32, 64)],
                 4: [lds(64, 96), w5r(0, 12)], 5: [w5r(12, 21), hq[0], hq[1], hq[2]], 6: [lds(96, 112)],
                 7: [lds(112, NREG0), "mark", hq[3], hq[4], hq[5], sq], 8: []},
                {1: [rpcheck, w4r(0, 7)], 2: [w4r(7, 14), lds(0, 32), hq[0]], 3: [w4r(14, 21), lds(32, 64), hq[1]],
                 4: [lds(64, 96), w5r(0, 10), hq[2]], 5: [w5r(10, 21), hq[3], hq[4]], 6: [lds(96, 112), hq[5], sq],
                 7: [lds(112, NREG0), "mark", w5q[0]], 8: []},
                {1: [rpcheck, w4r(0, 9)], 2: [w4r(9, 16), lds(0, 40)], 3: [w4r(16, 21), lds(40, 96)],
                 4: [w5r(0, 21)], 5: [hq[0], hq[1], hq[2], hq[3]], 6: [lds(96, 112), hq[4]],
                 7: [lds(112, NREG0), "mark", hq[5], sq, w5q[0]], 8: []},
                {1: [rpcheck, w4r(0, 6)], 2: [w4r(6, 13), lds(0, 32)], 3: [w4r(13, 21), lds(32, 72)],
                 4: [lds(72, 96), w5r(0, 15)], 5: [w5r(15, 21), w5q[2], hq[0], hq[1], hq[2]], 6: [lds(96, 112)],
                 7: [lds(112, NREG0), "mark", hq[3], hq[4], hq[5], sq, w5q[0], w5q[1]], 8: []},
                {1: [rpcheck, w4r(0, 6)], 2: [w4r(6, 13), lds(0, 32)], 3: [w4r(13, 21), lds(32, 72)],
                 4: [lds(72, 96), w5r(0, 15)], 5: [w5r(15, 21), w5q[2], w5q[1], hq[0], hq[1]], 6: [lds(96, 112), hq[2]],
                 7: [lds(112, NREG0), "mark", w5q[0], hq[3], hq[4], hq[5], sq], 8: []},
                {1: [rpcheck, w4r(0, 6)], 2: [w4r(6, 13), lds(0, 32)], 3: [w4r(13, 21), lds(32, 72)],
                 4: [lds(72, 96), w5r(0, 15)], 5: [w5r(15, 21), hq[0], hq[1], hq[2], hq[3]], 6: [lds(96, 112)],
                 7: [lds(112, NREG0), "mark", hq[4], hq[5], sq, w5q[0], w5q[1]], 8: []},
                {1: [rpcheck, w4r(0, 6)], 2: [w4r(6, 13), lds(0, 32)], 3: [w4r(13, 21), lds(32, 72)],
                 4: [lds(72, 96), w5r(0, 15)], 5: [w5r(15, 21), hq[0], hq[1], hq[2], hq[3]], 6: [lds(96, 112)],
                 7: [lds(112, NREG0), "mark", hq[4], hq[5], sq, w5q[0]], 8: [w5q[1], w5q[2]]},
                ][self.opt.get("plan", 8)]
        def cold(fs):
            def f():
                L = a.newlabel("Lcold")
                st = (self.vm.issued, self.vm.done)
                a(f"s_cmp_lg_u32 {s(sLayer)}, 0\ns_cbranch_scc1 {L}")
                for g in fs: g()
                a.label(L)
                self.vm.issued, self.vm.done = st
            return f
        cm = self.opt.get("cold", 0)
        self.vm.reset()
        if cm == 1: cold(hq)()
        if cm == 2:
            cold(hq[:2])()
            for b in range(1, 5): plan[b].append(cold(hq[b + 1:b + 2]))
        if cm == 3:
            cold(hq[:3])(); plan[1].append(cold(hq[3:]))
        if self.opt.get("h_st"): self.stamp("h_i0")
        a("s_barrier")
        for b in range(1, 8):
            tk = None
            if b <= 5:
                if self.opt.get("h_st2") == b: self.stamp("hh_0")
                self.kv_need(0x10001 << (b + 2))
                if self.opt.get("h_st2") == b: self.stamp("hh_1")
                tk = self.kv_dma(b + 2)
                if self.opt.get("h_st2") == b:
                    self.stamp("hh_2"); self.wait(vt=tk); self.stamp("hh_3")
            for f in plan[b]:
                if f == "mark": tk = self.vm.issued
                else: f()
            if tk: self.wait(vt=tk)
            if b == 1: a("s_waitcnt lgkmcnt(0)")
            if self.opt.get("h_st"): self.stamp(f"h_i{b}")
            a("s_barrier")
        for f in plan[8]: f()

    NT = N1 - 84

    def hwrite_pre(self):
        for i, r in enumerate((vL16, vL16b, vL16c)): self.a(f"v_add_u32 {v(self.HX+10+i)}, {s(sH)}, {v(r)}")

    def hwrite(self, n0, n1, nbase, reg):
        a = self.a
        for n in range(n0, n1, 4):
            byte = slot(n) * 1024
            r, off = self.HX + 10 + (byte >> 16), byte & 0xffff
            if slot(n + 3) != slot(n) + 3:
                a(f"s_add_u32 {s(t0)}, {s(sH)}, {byte}")
                a(f"s_cmp_ge_u32 {s(t0)}, {NSLOT*1024}\ns_cselect_b32 {s(t1)}, {NSLOT*1024}, 0\ns_sub_u32 {s(t0)}, {s(t0)}, {s(t1)}")
                a(f"v_add_u32 {v(vT)}, {s(t0)}, {v(vL16)}")
                r, off = vT, 0
            a(f"ds_write_b128 {v(r)}, {v(reg + n - nbase, 4)} offset:{off}")
            if self.opt.get("hsl"): a(f"s_sleep {self.opt['hsl']}")

    def kback(self):
        a = self.a
        a(f"s_lshl_b32 {s(t0)}, {s(sW1k)}, 1\ns_add_u32 {s(t0)}, {s(t0)}, {W1SLOT*1024}\nv_add_u32 {v(vT)}, {s(t0)}, {v(vL16)}")
        for i in range(5):
            if i == 3: a(f"v_add_u32 {v(vT)}, {3*16384}, {v(vT)}")
            for t in range(2): a(f"ds_write_b128 {v(vT)}, {v(self.KEEP+8*i+4*t,4)} offset:{(i%3)*16384+t*1024}")

    def slowpath(self):
        a = self.a
        S, M = self.SA, self.HT
        ops = self.att_ops(1)
        a.label("L_slow")
        a(f"""
        s_waitcnt vmcnt(0) lgkmcnt(0)
        s_mov_b64 {s(sChk,2)}, 0
        v_mov_b32 {v(M)}, 0xff800000
        v_mov_b32 {v(M+1)}, 0xff800000
        v_lshlrev_b32 {v(M+2)}, 1, {v(vF32)}
        """)
        for ps in range(2):
            L = f"L_slow{ps}"
            a(f"s_mov_b32 {s(t0)}, {s(sKV)}\ns_mov_b32 {s(t1)}, 64")
            if ps == 1:
                for i in range(32): a(f"v_mov_b32 {v(self.O0+i)}, 0")
            a.label(L)
            a(f"""
            buffer_load_dwordx4 {v(self.KM[0],4)}, {v(vL16)}, {s(S_WS,4)}, {s(t0)} offen sc1
            buffer_load_dwordx2 {v(self.KT,2)}, {v(M+2)}, {s(S_WS,4)}, {s(t0)} offen offset:2368 sc1
            """)
            if ps == 1:
                a(f"buffer_load_dwordx4 {v(self.VA[0],4)}, {v(vAVr)}, {s(S_WS,4)}, {s(t0)} offen offset:1024 sc1")
                a(f"buffer_load_dwordx4 {v(self.VB[0],4)}, {v(vAVr)}, {s(S_WS,4)}, {s(t0)} offen offset:1696 sc1")
            a("s_waitcnt vmcnt(0)")
            a(ops["z0"]); a(ops["z1"]); a("s_nop 9"); a(ops["2bc"]); a("s_nop 15\ns_nop 3")
            if ps == 0:
                for i in range(16): a(f"v_max3_f32 {v(M+i//8)}, {v(S+2*i)}, {v(S+2*i+1)}, {v(M+i//8)}")
            else:
                for i in range(32): a(f"v_sub_f32 {v(S+i)}, {v(S+i)}, {v(M+i//16)}")
                for i in range(32): a(f"v_exp_f32 {v(S+i)}, {v(S+i)}")
                a("s_nop 1")
                for f in range(4):
                    a(f"v_smfmac_f32_32x32x32_bf16 {v((self.O0, self.O1)[f>>1],16)}, {v((self.VA[0], self.VB[0])[f&1],4)}, {v(S+8*f,8)}, {v(vIdx)}")
                a("s_nop 7")
            a(f"""
            s_add_u32 {s(t0)}, {s(t0)}, {TG}
            s_sub_u32 {s(t1)}, {s(t1)}, 1
            s_cmp_lg_u32 {s(t1)}, 0
            s_cbranch_scc1 {L}
            """)
            if ps == 0:
                for i in range(2):
                    a(f"""
                    v_mov_b32 {v(M+3)}, {v(M+i)}
                    s_nop 1
                    v_permlane32_swap_b32 {v(M+i)}, {v(M+3)}
                    v_max_f32 {v(M+i)}, {v(M+i)}, {v(M+3)}
                    """)
        a("s_nop 7\ns_branch L_att_fin")

    def bload(self, k, BB, depth, sBase):
        a = self.a
        if k and k % 4 == 0: a(f"s_add_u32 {s(sBase)}, {s(sBase)}, 4096")
        a(f"buffer_load_dwordx4 {v(BB+4*(k%depth),4)}, {v(vL16)}, {s(S_WS,4)}, {s(sBase)} offen offset:{(k%4)*1024} sc1")
        self.g_vt[k] = self.vm.issue()

    def gemm_b0(self, BB, depth, sBase):
        self.g_vt = {}
        for k in range(depth - 1): self.bload(k, BB, depth, sBase)

    def gemm(self, nk, nt, n0, mf, acc, accn, AB, BB, depth, sBase, bars, b0_done=False, extra=None, zero_first=False,
             fill=None, top=None):
        a = self.a
        if not b0_done: self.gemm_b0(BB, depth, sBase)
        lt, vt = self.g_lt, self.g_vt
        for k in range(nk):
            self.wait(vt=vt[k], lt=lt[k])
            if k in bars: a("s_barrier")
            if top and k in top: top[k]()
            fl = list(fill.get(k, [])) if fill else []
            per = -(-len(fl) // nt)
            for t in range(nt):
                c = "0" if (zero_first and k == 0) else v(acc + accn * t, accn)
                if not self.opt.get("nomfma"):
                    a(f"{mf} {v(acc+accn*t,accn)}, {v(AB+4*(nt*(k%3)+t),4)}, {v(BB+4*(k%depth),4)}, {c}")
                if k + 2 < nk: self.aread(k + 2, t, nt, n0, AB)
                if t == 0 and k + depth - 1 < nk: self.bload(k + depth - 1, BB, depth, sBase)
                for f in fl[per * t: per * (t + 1)]:
                    a(f) if isinstance(f, str) else f()
            if extra and k in extra: extra[k]()

    def capture(self, f):
        main = self.a.lines; self.a.lines = []
        f()
        out = self.a.lines; self.a.lines = main
        return out

    def spread(self, fill, k0, items, per):
        for i in range(0, len(items), per):
            fill.setdefault(k0 + i // per, []).extend(items[i:i + per])
        return k0 + -(-len(items) // per)

    def pollissue(self, vaddr, soff, tmp):
        self.a(f"buffer_load_dword {v(tmp)}, {v(vaddr)}, {s(S_WS,4)}, {s(soff)} offen sc1")
        return self.vm.issue()

    def pollcheck(self, vaddr, soff, val, tmp):
        a = self.a
        L, D = a.newlabel("Lpc"), a.newlabel("Lpcd")
        a(f"v_cmp_gt_u32 vcc, {val}, {v(tmp)}\ns_cbranch_vccnz {L}")
        a.label(D)
        def f():
            a.label(L)
            self.poll(vaddr, soff, val, tmp)
            a(f"s_branch {D}")
        self.outofline(f)

    def aread(self, k, t, nt, n0, AB):
        ar, off = self.ldsaddr(slot(n0 + nt * k + t) * 1024)
        self.a(f"ds_read_b128 {v(AB+4*(nt*(k%3)+t),4)}, {v(ar)} offset:{off}")
        self.g_lt[k] = self.lg.issue()

    def gemm_pre(self, nt, n0, AB):
        self.g_lt = {}
        self.lg.reset()
        for k in range(2):
            for t in range(nt): self.aread(k, t, nt, n0, AB)

    MF16 = "v_mfma_f32_16x16x32_bf16"
    MF32 = "v_mfma_f32_32x32x16_bf16"

    def publish_pre(self):
        self.a(f"""
        s_lshr_b32 {s(sXf)}, {s(sT16)}, 1
        s_lshl_b32 {s(sXf)}, {s(sXf)}, 7
        s_and_b32 {s(t1)}, {s(sT16)}, 1
        s_lshl_b32 {s(t1)}, {s(t1)}, 2
        s_add_u32 {s(sXf)}, {s(sXf)}, {s(t1)}
        s_lshl_b32 {s(t1)}, {s(sC8)}, 3
        s_add_u32 {s(sXf)}, {s(sXf)}, {s(t1)}
        s_add_u32 {s(sXf)}, {s(sXf)}, {FX}
        """)

    def publish_x(self):
        a = self.a
        P = 136
        S, Q = P + 12, P + 14
        fl = self.mode
        a(f"s_add_u32 {s(t1)}, {s(sXv)}, 1\ns_add_u32 {s(sXv)}, {s(sXv)}, 2\ns_nop 1")
        for i in range(10):
            a(f"v_cvt_pk_bf16_f32 {v(P+i)}, {v(RES+2*i)}, {v(RES+2*i+1)}")
            if i == 3: a(f"buffer_store_dwordx4 {v(P,4)}, {v(vXm)}, {s(S_WS,4)}, 0 offen {fl}")
            if i == 7: a(f"buffer_store_dwordx4 {v(P+4,4)}, {v(vXm)}, {s(S_WS,4)}, 0 offen offset:2048 {fl}")
        a(f"""
        buffer_store_dwordx2 {v(P+8,2)}, {v(vXt)}, {s(S_WS,4)}, 0 offen {fl}
        v_pk_add_f32 {v(S,2)}, {v(RES,2)}, {v(RES+2,2)}
        v_pk_mul_f32 {v(Q,2)}, {v(RES,2)}, {v(RES,2)}
        v_pk_fma_f32 {v(Q,2)}, {v(RES+2,2)}, {v(RES+2,2)}, {v(Q,2)}
        """)
        for i in range(2, 10):
            a(f"v_pk_add_f32 {v(S,2)}, {v(S,2)}, {v(RES+2*i,2)}")
            a(f"v_pk_fma_f32 {v(Q,2)}, {v(RES+2*i,2)}, {v(RES+2*i,2)}, {v(Q,2)}")
        a(f"""
        v_add_f32 {v(S)}, {v(S)}, {v(S+1)}
        v_add_f32 {v(Q)}, {v(Q)}, {v(Q+1)}
        v_mov_b32 {v(P+16)}, 0
        v_mov_b32 {v(P+17)}, {s(t1)}
        v_permlane32_swap_b32 {v(S)}, {v(Q)}
        v_add_f32 {v(S)}, {v(S)}, {v(Q)}
        v_mov_b32 {v(Q)}, {v(S)}
        v_mov_b32 {v(P+18)}, {s(sXv)}
        s_nop 0
        v_permlane16_swap_b32 {v(S)}, {v(Q)}
        v_add_f32 {v(S)}, {v(S)}, {v(Q)}
        buffer_store_dword {v(S)}, {v(vSt)}, {s(S_WS,4)}, 0 offen {fl}
        """)
        pm = self.opt.get("pub", 1)
        if pm != 2: a("s_barrier")
        if pm:
            a(f"""
            s_mov_b64 exec, 1
            s_waitcnt vmcnt(1)
            buffer_store_dword {v(P+17)}, {v(P+16)}, {s(S_WS,4)}, {s(sXf)} offen {fl}
            s_mov_b64 exec, -1
            """)
        if pm == 2: a("s_barrier")

    def publish_x2(self):
        P = 136
        self.a(f"""
        s_mov_b64 exec, 1
        s_waitcnt vmcnt({1 if self.opt.get("pub", 1) else 0})
        buffer_store_dword {v(P+18)}, {v(P+16)}, {s(S_WS,4)}, {s(sXf)} offen {self.mode}
        s_mov_b64 exec, -1
        """)
        self.vm.reset()

    def stats_gate(self, extra, top, k0, soff, tmp, ld):
        tk = {}
        def pi(): tk["p"] = self.pollissue(vF16, soff, tmp)
        def pc():
            self.wait(vt=tk["p"])
            self.pollcheck(vF16, soff, s(sXv), tmp)
        if self.opt.get("pub", 1):
            extra[k0] = pi
            top[k0 + 5] = pc
        extra[k0 + 5] = ld

    P5BARS = [3, 8, 13]
    K4C = 31
    NW0 = NREG0 + (NSLOT - NREG0) // 4 * 4

    def chain_compute(self):
        a = self.a
        AB, BB = 156, 216
        D3, D4, D5 = self.opt.get("d3", 8), self.opt.get("d4", 8), self.opt.get("d5", 5)
        sB = sSoB
        self.att_publish()
        self.gemm_pre(5, N3, AB)
        self.publish_pre()
        a(f"""
        s_lshr_b32 {s(t2)}, {s(sT16)}, 1
        s_lshl_b32 {s(t2)}, {s(t2)}, 7
        s_add_u32 {s(t1)}, {s(sLayer)}, 1
        s_mul_i32 {s(sB)}, {s(sT16)}, {OST}
        s_add_u32 {s(sB)}, {s(sB)}, {WS_O}
        """)
        self.att_flag()
        if self.stop == "att": a("s_branch L_done")
        self.poll(vF32, t2, s(t1), 136)
        self.stamp("p3_flag")
        self.gemm(20, 5, N3, self.MF16, RES, 4, AB, BB, D3, sB, set())
        self.stamp("p3_loop")
        self.publish_x()
        self.stamp("p3_pub")
        if self.stop == "p3": a("s_branch L_done")
        AB, BB = 136, 172
        ACC = 208
        T, TM = 88, 120
        ST = TM
        HO, C0, TA_, XA = 204, 206, 205, 129
        R1 = 130
        sHo, sHf, sHp, sV = sSoA, sM0A, sM0B, sP
        K4B = (self.NW0 - N4) // 3 - 2
        a(f"""
        s_lshl_b32 {s(t0)}, {s(sT32c)}, 7
        s_lshl_b32 {s(t1)}, {s(sC16)}, 2
        s_add_u32 {s(sHf)}, {s(t0)}, {s(t1)}
        s_add_u32 {s(sHf)}, {s(sHf)}, {FH}
        s_add_u32 {s(sXp)}, {s(t0)}, {FX}
        s_sub_u32 {s(t2)}, {s(sXv)}, 1
        s_mul_i32 {s(sB)}, {s(sT32c)}, 40960
        s_add_u32 {s(sB)}, {s(sB)}, {WS_X}
        s_mul_i32 {s(sHo)}, {s(sT32c)}, 98304
        s_lshl_b32 {s(t1)}, {s(sC16)}, 10
        s_add_u32 {s(sHo)}, {s(sHo)}, {s(t1)}
        s_add_u32 {s(sHo)}, {s(sHo)}, {WS_H}
        s_lshr_b32 {s(sHp)}, {s(sT16)}, 1
        s_lshl_b32 {s(sHp)}, {s(sHp)}, 7
        s_add_u32 {s(sHp)}, {s(sHp)}, {FH}
        s_mul_i32 {s(sV)}, {s(sLayer)}, 3
        v_mov_b32 {v(C0)}, {s(sC0)}
        v_mov_b32 {v(C0+1)}, {s(sC0)}
        v_add_u32 {v(HO)}, {OST}, {v(vL16)}
        v_lshrrev_b32 {v(vT)}, 4, {v(vLane)}
        v_lshlrev_b32 {v(TA_)}, 5, {v(vT)}
        v_add_u32 {v(TA_)}, {TAB_CS4}, {v(TA_)}
        v_lshlrev_b32 {v(XA)}, 9, {v(vT)}
        v_lshl_add_u32 {v(XA)}, {v(vF16)}, 2, {v(XA)}
        v_mul_u32_u24 {v(vT)}, 80, {v(vT)}
        v_add_u32 {v(vT)}, {TAB_B2}, {v(vT)}
        """)
        self.publish_x2()
        self.gemm_pre(3, N4, AB)
        self.poll(vF16, sXp, s(t2), BB)
        self.stamp("p4_flag")
        tks = {}
        fill = {}
        def dsr(key, txt):
            def f():
                a(txt); tks[key] = self.lg.issue()
            return f
        lw = lambda key: (lambda: self.wait(lt=tks[key]))
        for i in range(5): fill.setdefault(1, []).append(dsr("b2", f"ds_read_b128 {v(T+4*i,4)}, {v(vT)} offset:{16*i}"))
        self.spread(fill, 4, [lw("b2")] + [f"v_add_f32 {v(RES+i)}, {v(RES+i)}, {v(T+i)}" for i in range(20)], 4)
        def ld(): tks["s"] = self.loadstats(sT32c, ST)
        extra, top = {}, {}
        self.stats_gate(extra, top, 1, sXp, 128, ld)
        R0 = self.vRstd
        k = self.spread(fill, 12, [lambda: self.wait(vt=tks["s"])] + self.capture(lambda: self.usestats(ST)) +
                        [f"v_mov_b32 {v(R1)}, {v(R0)}", f"v_mov_b32 {v(R1+1)}, {v(R0+1)}", "s_nop 1",
                         f"v_permlane16_swap_b32 {v(R0)}, {v(R1)}", f"v_permlane16_swap_b32 {v(R0+1)}, {v(R1+1)}"], 4)
        for q in range(4):
            off = 128 * (q >> 1) + 16 * (q & 1)
            fill.setdefault(k + 5 * q, []).extend([
                dsr(("t", q), f"ds_read_b128 {v(TM,4)}, {v(TA_)} offset:{off+TAB_B1-TAB_CS4}"),
                dsr(("t", q), f"ds_read_b128 {v(TM+4,4)}, {v(TA_)} offset:{off}")])
            for n in range(2):
                fill.setdefault(k + 5 * q + 3 + n, []).extend(([lw(("t", q))] if n == 0 else []) +
                    [f"v_fma_f32 {v(T+16*(q>>1)+8*n+4*(q&1)+i)}, {v(TM+4+i)}, {v((R0, R1)[n]+1)}, {v(TM+i)}" for i in range(4)])
        assert k + 20 <= 40, k
        vt4 = {}
        def b4(m):
            if m and m % 4 == 0: a(f"s_add_u32 {s(sB)}, {s(sB)}, 4096")
            a(f"buffer_load_dwordx4 {v(BB+4*(m%8),4)}, {v(XA)}, {s(S_WS,4)}, {s(sB)} offen offset:{(m&1)*256 + (m&2)*1024} sc1")
            vt4[m] = self.vm.issue()
        for m in range(6): b4(m)
        for j in range(40):
            self.wait(vt=vt4[j | 1], lt=self.g_lt[j])
            if j in (K4B, self.K4C): a("s_barrier")
            if j in top: top[j]()
            fl = list(fill.get(j, []))
            assert len(fl) <= 6
            for m in range(6):
                t, n = 3 * (j & 1) + (m >> 1), m & 1
                ac = ACC + 16 * (t >> 1) + 8 * n + 4 * (t & 1)
                a(f"{self.MF16} {v(ac,4)}, {v(AB+4*(3*(j%3)+(m>>1)),4)}, {v(BB+4*(((j&~1)+n)%8),4)}, {v(ac,4) if j > 1 else 0}")
                if m % 2 == 1 and j + 2 < 40: self.aread(j + 2, m >> 1, 3, N4, AB)
                if m == 0 and j + 6 < 40: b4(j + 6)
                if fl and (m > 0 or len(fl) > 5):
                    f = fl.pop(0); a(f) if isinstance(f, str) else f()
            if j in extra: extra[j]()
        a("s_barrier")
        self.stamp("p4_loop")
        TC, TB2 = 136, 152
        self.lg.reset(); self.vm.reset()
        for u in range(2):
            a(f"ds_read_b128 {v(TC+4*u,4)}, {v(TA_)} offset:{256+16*u}")
            a(f"ds_read_b128 {v(TC+8+4*u,4)}, {v(TA_)} offset:{256+16*u+TAB_B1-TAB_CS4}")
        HP = 184
        Y2, Zz = 168, 176
        FT = 192
        R2 = self.vRstd
        AB5, BB5 = 88, 208
        OTH, RA = 148, 196
        sB1 = sXp
        vt5, lt5 = {}, {}
        def b5(K, which=(0, 1)):
            for i in which:
                r = (sB, sB1)[i]
                if K and K % 2 == 0: a(f"s_add_u32 {s(r)}, {s(r)}, 4096")
                a(f"buffer_load_dwordx4 {v(BB5+8*(K%D5)+4*i,4)}, {v(vL16)}, {s(S_WS,4)}, {s(r)} offen offset:{(K%2)*2048} sc1")
                vt5[K] = self.vm.issue()
        def a5(K, t_):
            n = N5 + 10 * K + t_
            byte = slot(n) * 1024
            wrap = slot(n + 5) != slot(n) + 5
            r, off = (RA + 3, byte - (NSLOT - 5) * 1024) if wrap else (RA + (byte >> 16), byte & 0xffff)
            a(f"ds_read_b128 {v(AB5+4*(5*(K%3)+t_),4)}, {v(r)} offset:{off}")
            lt5[K] = self.lg.issue()
        a(f"""
        s_and_b32 {s(t0)}, {s(sW)}, 1
        s_mul_i32 {s(t1)}, {s(t0)}, 5120
        v_add_u32 {v(RA)}, {s(t1)}, {v(vL16)}
        v_add_u32 {v(RA+1)}, {s(t1)}, {v(vL16b)}
        v_add_u32 {v(RA+2)}, {s(t1)}, {v(vL16c)}
        s_xor_b32 {s(t1)}, {s(t0)}, 1
        s_mul_i32 {s(t1)}, {s(t1)}, {(NSLOT-5)*1024}
        v_add_u32 {v(RA+3)}, {s(t1)}, {v(vL16)}
        s_lshl_b32 {s(t0)}, {s(t0)}, 10
        s_add_u32 {s(t0)}, {s(t0)}, {WS_H}
        s_mul_i32 {s(sB)}, {s(sT16)}, {OST}
        s_add_u32 {s(sB)}, {s(sB)}, {s(t0)}
        s_xor_b32 {s(t1)}, {s(sT16)}, 1
        s_mul_i32 {s(sB1)}, {s(t1)}, {OST}
        s_add_u32 {s(sB1)}, {s(sB1)}, {s(t0)}
        """)
        stk = {}
        def flag(t):
            self.wait(vt=stk[t])
            a(f"s_add_u32 {s(sV)}, {s(sV)}, 1")
            self.dual(lambda fl: self.flagstore(sHf, s(sV), fl, FT, FT + 1))
        for t in range(3):
            for h in range(2):
                Y = ACC + 16 * t + 8 * h
                Tq = T + 16 * t + 8 * h
                R2 = (R0, R1)[h]
                if t == 2:
                    Tq = TB2
                    if h == 0: a("s_waitcnt lgkmcnt(0)")
                    for p in range(4):
                        a(f"v_pk_fma_f32 {v(Tq+2*p,2)}, {v(TC+2*p,2)}, {v(R2,2)}, {v(TC+8+2*p,2)} op_sel:[0,1,0] op_sel_hi:[1,1,1]")
                for p in range(4):
                    a(f"v_pk_fma_f32 {v(Y+2*p,2)}, {v(Y+2*p,2)}, {v(R2,2)}, {v(Tq+2*p,2)} op_sel_hi:[1,0,1]")
                for p in range(4): a(f"v_pk_mul_f32 {v(Y2+2*p,2)}, {v(Y+2*p,2)}, {v(Y+2*p,2)}")
                for p in range(4): a(f"v_pk_fma_f32 {v(Y2+2*p,2)}, {v(Y2+2*p,2)}, {s(sC1,2)}, {v(C0,2)}")
                for p in range(4): a(f"v_pk_mul_f32 {v(Zz+2*p,2)}, {v(Y2+2*p,2)}, {v(Y+2*p,2)}")
                for i in range(8): a(f"v_exp_f32 {v(Zz+i)}, {v(Zz+i)}")
                late = self.opt.get("flate")
                if t >= 1 and h == 1 and not late: flag(t - 1)
                if t == 2 and late: flag(h)
                if t == 2 and h == 1:
                    a(f"s_sub_u32 {s(t1)}, {s(sV)}, 1")
                    if self.opt.get("e_st"): self.stamp("p4_pre")
                    self.wait(vt=stk["p"])
                    self.pollcheck(vF16, sHp, s(t1), FT + 2)
                    if self.opt.get("e_st"): self.stamp("p4_chk")
                    for K in range(D5 - 1): b5(K)
                    self.lg.reset()
                    for K in range(2):
                        for t_ in range(5): a5(K, t_)
                    if self.opt.get("e_st"): self.stamp("p4_b0")
                for p in range(4): a(f"v_pk_add_f32 {v(Zz+2*p,2)}, {v(Zz+2*p,2)}, 1.0 op_sel_hi:[1,0]")
                for i in range(8): a(f"v_rcp_f32 {v(Zz+i)}, {v(Zz+i)}")
                if t == 2 and h == 0: stk["p"] = self.pollissue(vF16, sHp, FT + 2)
                for p in range(4): a(f"v_pk_mul_f32 {v(Y+2*p,2)}, {v(Y+2*p,2)}, {v(Zz+2*p,2)}")
                for p in range(4): a(f"v_cvt_pk_bf16_f32 {v(HP+4*h+p)}, {v(Y+2*p)}, {v(Y+2*p+1)}")
                def em(fl, t=t, h=h):
                    a(f"buffer_store_dwordx4 {v(HP+4*h,4)}, {v(HO if h else vL16)}, {s(S_WS,4)}, {s(sHo)} offen {fl}")
                    stk[t] = self.vm.issue()
                self.dual(em)
                if h == 1 and t < 2: a(f"s_add_u32 {s(sHo)}, {s(sHo)}, 16384")
                if self.opt.get("e_st") and (t, h) != (2, 1): self.stamp(f"p4_e{t}{h}")
        self.stamp("p4_pub")
        assert D5 <= 5
        top, extra = {}, {}
        extra[1] = [lambda: flag(2)]
        for st in (1, 2):
            kc = 8 * st - (D5 - 1)
            def pi(st=st): stk[("p", st)] = self.pollissue(vF16, sHp, FT + 2)
            def pc(st=st):
                self.wait(vt=stk[("p", st)])
                if st == 1: a(f"s_sub_u32 {s(t1)}, {s(sV)}, 1")
                self.pollcheck(vF16, sHp, s(t1 if st == 1 else sV), FT + 2)
            extra.setdefault(kc - 3, []).append(pi)
            top[kc] = pc
        XS5 = slot(N5 + 100) * 1024
        assert slot(N5 + 119) == slot(N5 + 100) + 19 and 10 * (self.P5BARS[-1] + 1) >= 120
        extra.setdefault(16, []).append(lambda: a(f"""
            s_mul_i32 {s(t0)}, {s(sW)}, 5120
            s_add_u32 {s(t0)}, {s(t0)}, {XS5}
            v_add_u32 {v(RA+4)}, {s(t0)}, {v(vL16)}
            s_xor_b32 {s(t0)}, {s(sW)}, 1
            s_mul_i32 {s(t0)}, {s(t0)}, 5120
            s_add_u32 {s(t0)}, {s(t0)}, {XS5}
            v_add_u32 {v(RA+5)}, {s(t0)}, {v(vL16)}
            """))
        assert slot(N5 + 131) == slot(N5 + 100) + 31 and 10 * (self.P5BARS[-1] + 1) >= 132
        fin = self.final_pre(XS5)
        for K in range(24):
            n0 = len(a.lines)
            self.wait(vt=vt5[K], lt=lt5[K])
            if K in self.P5BARS: a("s_barrier")
            if K in top and not self.opt.get("x_notop"): top[K]()
            if self.opt.get("al5"): a(".p2align 3")
            order = [(t_, i) for t_ in range(5) for i in range(2)] if K < 23 else [(t_, i) for i in (1, 0) for t_ in range(5)]
            for m, (t_, i) in enumerate(order):
                acc = (RES, OTH)[i] + 4 * t_
                c = "0" if (K == 0 and i == 1) else v(acc, 4)
                a(f"{self.MF16} {v(acc,4)}, {v(AB5+4*(5*(K%3)+t_),4)}, {v(BB5+8*(K%D5)+4*i,4)}, {c}")
                AP, BP = [((0, 1, 2, 3, 4), (5, 5)), ((0, 1, 3, 5, 6), (2, 7)), ((1, 3, 5, 7, 9), (0, 4)), ((0, 2, 4, 6, 8), (3, 9))][self.opt.get("l5", 2)]
                if m in AP and K + 2 < 24: a5(K + 2, AP.index(m))
                if K >= 20 and fin: a(fin.pop(0))
                for i_ in range(2):
                    if m == BP[i_] and K + D5 - 1 < 24:
                        if self.opt.get("x_nob"): vt5[K + D5 - 1] = 0
                        else: b5(K + D5 - 1, (i_,))
            for f in extra.get(K, []): f()
            if self.opt.get("k_st"): self.stamp(f"k{K}")
        assert not fin
        for t_ in range(5): a(f"ds_write_b128 {v(RA+4)}, {v(OTH+4*t_,4)} offset:{1024*t_}")
        a("s_waitcnt lgkmcnt(0)\ns_barrier")
        for t_ in range(5): a(f"ds_read_b128 {v(OTH+4*t_,4)}, {v(RA+5)} offset:{1024*t_}")
        for t_ in range(5):
            a(f"s_waitcnt lgkmcnt({4-t_})")
            for i in range(2): a(f"v_pk_add_f32 {v(RES+4*t_+2*i,2)}, {v(RES+4*t_+2*i,2)}, {v(OTH+4*t_+2*i,2)}")
        self.stamp("p5_loop")
        a(f"s_cmp_lg_u32 {s(sLayer)}, 0\ns_cbranch_scc1 L_final")
        self.publish_x()
        self.stamp("p5_pub")
        self.kback()
        self.publish_x2()
        a("s_setprio 0")
        a("s_branch L_p1b")

    def final_pre(self, XS5):
        A = 168
        o = f"""s_mul_i32 {s(t2)}, {s(sW)}, 3072
        s_add_u32 {s(t2)}, {s(t2)}, {XS5 + 20480}
        v_mul_u32_u24 {v(A)}, 40, {v(vF16)}
        v_add_u32 {v(A)}, {s(t2)}, {v(A)}
        v_lshrrev_b32 {v(A+2)}, 4, {v(vLane)}
        v_lshl_add_u32 {v(A+1)}, {v(A+2)}, 3, {v(A)}
        v_lshl_add_u32 {v(A)}, {v(A+2)}, 4, {v(A)}
        v_add_u32 {v(A+2)}, {s(t2)}, {v(vL16)}
        s_mul_i32 {s(t2)}, {s(sT16)}, {16*1280}
        s_mul_i32 {s(t3)}, {s(sC8)}, 160
        s_add_u32 {s(t2)}, {s(t2)}, {s(t3)}""".split("\n")
        for i in range(3):
            o += f"""v_add_u32 {v(A+3+i)}, {64*i}, {v(vLane)}
            v_mul_u32_u24 {v(A+6)}, 6554, {v(A+3+i)}
            v_lshrrev_b32 {v(A+6)}, 16, {v(A+6)}
            v_mul_u32_u24 {v(A+6)}, {1280-160}, {v(A+6)}
            v_lshl_add_u32 {v(A+3+i)}, {v(A+3+i)}, 4, {v(A+6)}""".split("\n")
        return o

    def final(self):
        a = self.a
        a.label("L_final")
        P, A = 140, 168
        for i in range(10):
            a(f"v_cvt_pk_bf16_f32 {v(P+i)}, {v(RES+2*i)}, {v(RES+2*i+1)}")
            if i == 3: a(f"ds_write_b128 {v(A)}, {v(P,4)}")
            if i == 7: a(f"ds_write_b128 {v(A)}, {v(P+4,4)} offset:64")
        a(f"ds_write_b64 {v(A+1)}, {v(P+8,2)} offset:128")
        for i in range(3): a(f"ds_read_b128 {v(P+12+4*i,4)}, {v(A+2)} offset:{1024*i}")
        for i in range(3):
            a(f"s_waitcnt lgkmcnt({2-i})")
            if i == 2: a("s_mov_b32 exec_hi, 0")
            a(f"buffer_store_dwordx4 {v(P+12+4*i,4)}, {v(A+3+i)}, {s(S_OUT,4)}, {s(t2)} offen")
        a("s_mov_b32 exec_hi, -1")
        if self.diag: a("s_waitcnt vmcnt(0)")
        self.stamp("p5_pub")
        a("s_branch L_done" if self.diag else "s_endpgm")

    def tables(self):
        a = self.a
        L = a.newlabel("Ltab")
        A, B, C = 136, 137, 138
        PP = 140
        a(f"""
        s_cmp_ge_u32 {s(sW)}, 6
        s_cbranch_scc1 {L}
        s_lshr_b32 {s(t0)}, {s(sH)}, 4
        v_add_u32 {v(A)}, {s(t0)}, {v(vLane)}
        v_min_u32 {v(A)}, 95, {v(A)}                    ; feature
        s_mul_i32 {s(t0)}, {s(sC16)}, 192
        v_lshl_add_u32 {v(B)}, {v(A)}, 1, {s(t0)}
        global_load_ushort {v(C)}, {v(B)}, {s(P_B1,2)}
        v_lshlrev_b32 {v(A)}, 2, {v(A)}
        s_mul_i32 {s(t0)}, {s(sC16)}, 7680
        s_add_u32 {s(t0)}, {s(t0)}, {CS4P}
        s_add_u32 {s(t1)}, {s(t0)}, 3840
        """)
        for p in range(20):
            a(f"buffer_load_dword {v(PP+p)}, {v(A)}, {s(S_WS,4)}, {s(t0 if p < 10 else t1)} offen offset:{384*(p%10)} sc1")
        a(f"v_add_u32 {v(A)}, {TAB_CS4}, {v(A)}\ns_waitcnt vmcnt(0)")
        for p in range(1, 20): a(f"v_add_f32 {v(PP)}, {v(PP)}, {v(PP+p)}")
        a(f"""
        v_lshlrev_b32 {v(C)}, 16, {v(C)}
        ds_write_b32 {v(A)}, {v(PP)}
        ds_write_b32 {v(A)}, {v(C)} offset:{TAB_B1-TAB_CS4}
        """)
        a.label(L)
        L = a.newlabel("Ltab")
        a(f"""
        s_cmp_lt_u32 {s(sW)}, 6
        s_cbranch_scc1 {L}
        s_lshr_b32 {s(t0)}, {s(sH)}, 4
        s_and_b32 {s(t0)}, {s(t0)}, 64
        v_add_u32 {v(A)}, {s(t0)}, {v(vLane)}
        v_min_u32 {v(A)}, 79, {v(A)}
        s_mul_i32 {s(t0)}, {s(sC8)}, 160
        v_lshl_add_u32 {v(B)}, {v(A)}, 1, {s(t0)}
        global_load_ushort {v(C)}, {v(B)}, {s(P_B2,2)}
        v_cmp_lt_u32 vcc, 63, {v(A)}
        v_bfe_u32 {v(B)}, {v(A)}, 3, 2
        v_bfe_u32 {v(PP)}, {v(A)}, 2, 2
        v_cndmask_b32 {v(B)}, {v(B)}, {v(PP)}, vcc
        v_and_b32 {v(PP)}, 7, {v(A)}
        v_and_b32 {v(PP+1)}, 3, {v(A)}
        v_cndmask_b32 {v(PP)}, {v(PP)}, {v(PP+1)}, vcc
        v_lshrrev_b32 {v(A)}, 5, {v(A)}
        v_lshl_add_u32 {v(A)}, {v(A)}, 3, {v(PP)}
        v_mad_u32_u24 {v(A)}, {v(B)}, 20, {v(A)}
        v_lshlrev_b32 {v(A)}, 2, {v(A)}
        v_add_u32 {v(A)}, {TAB_B2}, {v(A)}
        s_waitcnt vmcnt(0)
        v_lshlrev_b32 {v(C)}, 16, {v(C)}
        ds_write_b32 {v(A)}, {v(C)}
        """)
        a.label(L)

    def chain_helper(self):
        a = self.a
        TH = self.opt.get("th", 8)
        NT = self.NT
        if self.stop == "att": a("s_branch L_done")
        self.hwrite_pre()
        a(f"s_setprio {self.opt.get('cprio', 0)}")
        self.hwrite(NREG0, self.NW0, NREG0, self.WREG)
        a("s_waitcnt lgkmcnt(0)\ns_barrier")
        if self.stop == "p3": a("s_branch L_done")
        o3 = self.opt.get("o3", 2)
        if o3 == 0: self.hwrite(self.NW0, N5, NREG0, self.WREG)
        if o3 < 2: tk = self.dma_run(N5, N4 + NSLOT, 4, sH, TH)
        if o3: self.hwrite(self.NW0, N5, NREG0, self.WREG)
        if o3 == 2: tk = self.dma_run(N5, N5 + 20, 4, sH, 0)
        a("s_waitcnt lgkmcnt(0)\ns_barrier")
        if o3 == 2: tk = self.dma_run(N5 + 20, N4 + NSLOT, 4, sH, 1)
        self.vm.waitall()
        a("s_barrier")
        nxt = N4 + NSLOT + self.opt.get("n4c", 40)
        assert nxt <= N4 + 3 * (self.K4C + 1) + NSLOT
        tk = self.dma_run(N4 + NSLOT, nxt, 4, sH, TH)
        self.wait(vt=tk[N5 + 10 * (self.P5BARS[0] + 2) - 1])
        a("s_barrier")
        e = min(N5 + NSLOT, NT)
        tk.update(self.dma_run(nxt, e, 4, sH, TH))
        nxt = e
        bars = self.P5BARS
        for i, k in enumerate(bars):
            kn = bars[i + 1] if i + 1 < len(bars) else 24
            need = N5 + 10 * min(kn + 2, 24) - 1
            assert need < nxt, (k, need, nxt)
            self.wait(vt=tk[min(need, max(tk))])
            a("s_waitcnt lgkmcnt(0)\ns_barrier")
            if i == self.opt.get("wbat", 9):
                L = a.newlabel("Lwb")
                a(f"s_cmp_eq_u32 {s(sLayer)}, 0\ns_cbranch_scc1 {L}\ns_cmp_lg_u32 {s(sW)}, 7\ns_cbranch_scc1 {L}")
                a(f"s_cmp_lg_u32 {s(sJ)}, 0\ns_cbranch_scc1 {L}")
                a("buffer_wbl2 sc1")
                a.label(L)
            lim = min(N5 + 10 * (k + 1) + NSLOT, N1)
            e = nxt + (lim - nxt) // 4 * 4
            if not self.opt.get("x_nohw"): self.hwrite(nxt, e, NT, self.HR)
            nxt = e
        assert nxt == N1
        a(f"s_cmp_eq_u32 {s(sLayer)}, 0\ns_cbranch_scc1 L_hcont")
        a("s_branch L_done" if self.diag else "s_endpgm")
        a.label("L_hcont")
        a("s_setprio 0\ns_barrier\ns_barrier")

    def p1b(self):
        a = self.a
        AB, BB = 144, 88
        ST = 168
        sB = sSoB
        self.kback()
        a.label("L_p1b")
        a("s_waitcnt lgkmcnt(0)\ns_barrier")
        if self.stop == "p5": a("s_branch L_done")
        a(f"s_add_u32 {s(sLayer)}, {s(sLayer)}, 1\ns_add_u32 {s(sKV)}, {s(sKV)}, {32*KVH}")
        self.gemm_pre(2, N1, AB)
        a(f"""
        s_lshl_b32 {s(t0)}, {s(sT32)}, 7
        s_add_u32 {s(sXp)}, {s(t0)}, {FX}
        s_mov_b32 {s(sXv)}, 4
        s_mul_i32 {s(sB)}, {s(sT32)}, 40960
        s_add_u32 {s(sB)}, {s(sB)}, {WS_X}
        """)
        self.poll(vF16, sXp, "3", ST)
        self.stamp("p1b_flag")
        tks = {}
        def ld(): tks["s"] = self.loadstats(sT32, ST)
        def us():
            self.wait(vt=tks["s"]); self.usestats(ST)
        extra, top, fill = {18: us}, {}, {}
        self.stats_gate(extra, top, 4, sXp, 176, ld)
        pre = self.epi1_pre()
        assert self.spread(fill, 20, pre[:-1], 4) <= 38
        extra[39] = pre[-1]
        self.gemm(40, 2, N1, self.MF32, self.ACC, 16, AB, BB, self.opt.get("d1", 6), sB, set(), extra=extra, top=top, zero_first=True, fill=fill)
        self.stamp("p1a_loop")
        a("s_nop 7\ns_branch L_epi1")

    def bench(self):
        a = self.a
        o = self.opt
        AB, BB = 48, 108
        a("s_waitcnt vmcnt(0)")
        self.consts()
        self.vm.reset()
        self.dma_run(0, NSLOT, 8, sW1k)
        self.vm.waitall()
        a.label("L_bench")
        a("s_barrier")
        which = o["bench"]
        if which != 1: a(f"s_cmp_ge_u32 {s(sW)}, 4\ns_cbranch_scc1 L_bh")
        if o.get("prio"):
            a(f"s_cmp_lt_u32 {s(sW)}, 4\ns_cbranch_scc1 L_bp\ns_setprio 1"); a.label("L_bp")
        nk, nt, mf, acc, accn, sT, stride, base = {
            1: (40, 2, self.MF32, self.ACC, 16, sT32, 40960, WS_X),
            3: (20, 5, self.MF16, RES, 4, sT16, OST, WS_O),
            4: (40, 3, self.MF32, 208, 16, sT32c, 40960, WS_X),
            5: (48, 5, self.MF16, RES, 4, sT16, OST, WS_H)}[which]
        self.gemm_pre(nt, 0, AB)
        stride += o.get("pad", 0)
        a(f"s_mul_i32 {s(sSoB)}, {s(sT)}, {stride}\ns_add_u32 {s(sSoB)}, {s(sSoB)}, {base}")
        self.vm.reset()
        self.stamp("b0")
        if o.get("m16"):
            D = o.get("depth", 8)
            self.gemm_b0(BB, D, sSoB)
            A4 = lambda k, t: AB + 4 * (nt * (k % 4) + t)
            lt = {0: self.lg.issued, 1: self.lg.issued}
            for K in range(0, nk, 2):
                self.wait(vt=self.g_vt[K + 1], lt=lt[K + 1])
                m = 0
                for kk in range(2):
                    for t in range(nt):
                        for n_ in range(2):
                            ac = acc + 4 * (2 * (nt * kk + t) + n_)
                            a(f"{self.MF16} {v(ac,4)}, {v(A4(K+kk,t),4)}, {v(BB+4*((K+n_)%D),4)}, {v(ac,4) if K else 0}")
                            if m < 2 * nt and K + 2 < nk:
                                k2, t2_ = K + 2 + m // nt, m % nt
                                ar, off = self.ldsaddr(slot(nt * k2 + t2_) * 1024)
                                a(f"ds_read_b128 {v(A4(k2,t2_),4)}, {v(ar)} offset:{off}"); lt[k2] = self.lg.issue()
                            if m == 2 * nt and K + D - 1 < nk: self.bload(K + D - 1, BB, D, sSoB)
                            m += 1
                if K + D < nk: self.bload(K + D, BB, D, sSoB)
        else:
            self.gemm(nk, nt, 0, mf, acc, accn, AB, BB, o.get("depth", 8), sSoB, set(), zero_first=True)
        self.stamp("b1")
        if which != 1:
            a("s_branch L_be")
            a.label("L_bh")
            self.vm.reset()
            if o.get("hdma"): self.dma_run(N5, N5 + o["hdma"], 4, sH, o.get("th", 4))
            self.vm.waitall()
            self.stamp("bh")
            a.label("L_be")
        a("s_barrier")
        self.stamp("b2")
        a(f"s_add_u32 {s(sLayer)}, {s(sLayer)}, 1\ns_cmp_lt_u32 {s(sLayer)}, 2\ns_cbranch_scc1 L_bench\ns_branch L_done")

    def build(self):
        a = self.a
        self.init()
        if self.opt.get("bench"): self.bench()
        a("s_branch L_front_end")
        a.lines += self.front
        a.label("L_front_end")
        self.stamp("init")
        self.p1a()
        if self.stop == "p1a": a("s_branch L_done")
        self.epi1()
        self.stamp("epi1")
        a(f"s_cmp_ge_u32 {s(sW)}, 4\ns_cbranch_scc1 L_att_helper")
        self.att_compute()
        a(f"s_cmp_eq_u32 {s(sFast)}, 0\ns_cbranch_scc1 L_chain_safe")
        self.mode = ""
        self.chain_compute()
        self.final()
        main = a.lines; a.lines = self.ool
        a.label("L_chain_safe")
        self.mode = "sc1"
        self.chain_compute()
        a.lines = main
        self.mode = None
        self.att_helper()
        self.chain_helper()
        self.p1b()
        self.slowpath()
        a.lines += self.ool0
        a.label('L_hotend')
        a.lines += self.ool
        a.label("L_done")
        if self.diag:
            a(f"""
            s_lshl_b32 {s(t0)}, s2, 3
            s_add_u32 {s(t0)}, {s(t0)}, {s(sW)}
            s_lshl_b32 {s(t0)}, {s(t0)}, 8
            s_add_u32 {s(t0)}, {s(t0)}, {WS_END}
            s_memrealtime {s(sStampT,2)}
            s_memtime {s(sStampT+2,2)}
            s_waitcnt lgkmcnt(0)
            v_writelane_b32 {v(vDiag)}, {s(sStampT+2)}, 29
            v_writelane_b32 {v(vDiag)}, {s(sStampT)}, 31
            v_writelane_b32 {v(vDiag)}, {s(sFast)}, 30
            v_writelane_b32 {v(vDiag)}, {s(sSpin)}, 62
            v_lshlrev_b32 {v(vT)}, 2, {v(vLane)}
            v_add_u32 {v(vT)}, {s(t0)}, {v(vT)}
            global_store_dword {v(vT)}, {v(vDiag)}, {s(P_WS,2)}
            v_add_u32 {v(vT)}, 0x80000, {v(vT)}
            global_store_dword {v(vT)}, v0, {s(P_WS,2)}
            """)
        a.label("L_exit")
        a("s_endpgm")
        a.label("L_codeend")
        return a

HEADER = """; Persistent two-layer attention + MLP block, one workgroup per CU (generated by my gen.py).
; @launch grid=(256,1,1) block=(512,1,1) lds=163840
.amdgcn_target "amdgcn-amd-amdhsa--gfx950"
.text
.globl {k}
.p2align 8
.type {k},@function
{k}:
"""
FOOTER = """.section .rodata,"a"
.p2align 6
.amdhsa_kernel {k}
  .amdhsa_next_free_vgpr 256
  .amdhsa_next_free_sgpr 102
  .amdhsa_accum_offset 256
  .amdhsa_group_segment_fixed_size 0
  .amdhsa_kernarg_size 88
  .amdhsa_user_sgpr_count 2
  .amdhsa_user_sgpr_kernarg_segment_ptr 1
  .amdhsa_system_sgpr_workgroup_id_x 1
  .amdhsa_float_denorm_mode_32 3
.end_amdhsa_kernel
"""

def generate(**kw):
    g = Gen(**kw)
    a = g.build()
    pr = lint(a.lines)
    for p in pr: print("LINT:", p, file=sys.stderr)
    return HEADER.format(k=KNAME) + a.text() + FOOTER.format(k=KNAME), g

if __name__ == "__main__":
    import argparse
    ap = argparse.ArgumentParser()
    ap.add_argument("-o", default="interleave_layers__softmax_full_mha__dense_activation_gelu__prompt.s")
    ap.add_argument("--diag", action="store_true")
    ap.add_argument("--stop")
    ap.add_argument("--safe", action="store_true")
    ap.add_argument("--slow", action="store_true")
    x = ap.parse_args()
    txt, g = generate(diag=x.diag, stop=x.stop, force_safe=x.safe, force_slow=x.slow)
    open(x.o, "w").write(txt)
    print("wrote", x.o, len(txt), "bytes", len(g.a.lines), "lines")
```
